```python
import torch

def _softmax(x, axis=-1):
    return torch.softmax(x, dim=axis)
def _gelu(x):
    return torch.nn.functional.gelu(x, approximate="tanh")
def _silu(x):
    return torch.nn.functional.silu(x)
def _sigmoid(x):
    return torch.sigmoid(x)
def _layernorm(x, axis=-1, eps=1e-5):
    m = x.mean(dim=axis, keepdim=True)
    v = x.var(dim=axis, keepdim=True, unbiased=False)
    return (x - m) / torch.sqrt(v + eps)
def _scatter_add(tgt, idx, src, axis=0):
    return tgt.clone().index_add_(axis, idx, src)
def _segment_sum(src, seg, n):
    out = torch.zeros((n,) + src.shape[1:], dtype=src.dtype)
    return out.index_add_(0, seg, src)
def _pad(x, pw):
    flat = tuple(v for pair in reversed(pw) for v in pair)
    return torch.nn.functional.pad(x, flat)

kernel_name = 'parallel_sum__linear_attn_block__dense_activation_mish__prompt'

def setup_inputs():

    _w = (lambda a: (lambda t: t.to(torch.bfloat16) if t.is_floating_point() else t)(torch.as_tensor(a)))
    def _A_setup():
        B, S, D = 1, 2048, 640
        return {
            "x": _w((lambda *s: torch.randn(*s, dtype=torch.bfloat16) * 0.05)(B, S, D)),
            "wqkv": _w((lambda *s: torch.randn(*s, dtype=torch.bfloat16) * 0.1)(D, 3 * D)),
            "wo": _w((lambda *s: torch.randn(*s, dtype=torch.bfloat16) * 0.05)(D, D)),
        }
    _A_in = _A_setup()

    def _B_setup():
        B, S, D, F = 1, 2048, 640, 1536
        return {
            "x": _w((lambda *s: torch.randn(*s, dtype=torch.bfloat16) * 0.05)(B, S, D)),
            "w1": _w((lambda *s: torch.randn(*s, dtype=torch.bfloat16) * 0.8)(D, F) * (D ** -0.5)),
            "b1": _w((lambda *s: torch.randn(*s, dtype=torch.bfloat16) * 0.4)(F)),
            "w2": _w((lambda *s: torch.randn(*s, dtype=torch.bfloat16) * 0.1)(F, D) * (F ** -0.5)),
        }
    _B_in = _B_setup()

    return {
        "A_x": _A_in["x"],
        "A_wqkv": _A_in["wqkv"],
        "A_wo": _A_in["wo"],
        "B_x": _B_in["x"],
        "B_w1": _B_in["w1"],
        "B_b1": _B_in["b1"],
        "B_w2": _B_in["w2"],
    }

def reference(A_x, A_wqkv, A_wo, B_x, B_w1, B_b1, B_w2):
    def _A_ref(x, wqkv, wo):
        B, S, D = x.shape
        H = 32; Dh = D // H
        qkv = (lambda x, *d: x.permute(*d))((x @ wqkv).reshape(B, S, 3, H, Dh), 2, 0, 3, 1, 4)
        q, k, v = qkv[0], qkv[1], qkv[2]
        phi = lambda t: torch.where(t > 0, t + 1, torch.exp(t)) + 1e-6
        pq, pk = phi(q), phi(k)
        kv = torch.einsum("bhsd,bhse->bhde", pk, v)
        z = torch.einsum("bhsd->bhd", pk)
        num = torch.einsum("bhqd,bhde->bhqe", pq, kv)
        den = torch.einsum("bhqd,bhd->bhq", pq, z)[..., None] + 1e-6
        o = num / den
        return (lambda x, *d: x.permute(*d))(o, 0, 2, 1, 3).reshape(B, S, D) @ wo

    def _B_ref(x, w1, b1, w2):
        h = torch.einsum("bsd,df->bsf", x, w1) + b1
        sp = torch.log1p(torch.exp(-torch.abs(h))) + torch.where(h > 0, h, torch.zeros_like(h))
        act = h * torch.tanh(sp)
        return torch.einsum("bsf,fd->bsd", act, w2)

    x = A_x
    xn = _layernorm(x, axis=-1)
    return x + _A_ref(xn, A_wqkv, A_wo) + _B_ref(xn, B_w1, B_b1, B_w2)
```

```python
import re

REG_RE = re.compile(r'^(-|\|)?([vs])(\d+)\|?$')
RANGE_RE = re.compile(r'^(-)?([vs])\[(\d+):(\d+)\]$')

def regs_of(op):
    op = op.strip()
    m = REG_RE.match(op)
    if m:
        return [(m.group(2), int(m.group(3)))]
    m = RANGE_RE.match(op)
    if m:
        return [(m.group(2), i) for i in range(int(m.group(3)), int(m.group(4)) + 1)]
    if op == 'vcc': return [('s', 'vcc')]
    if op == 'exec': return [('s', 'exec')]
    if op == 'm0': return [('s', 'm0')]
    return []

TRANS = ('v_exp_f32', 'v_log_f32', 'v_rcp_f32', 'v_rsq_f32', 'v_sqrt_f32', 'v_sin_f32', 'v_cos_f32')

class Ins:
    def __init__(self, text):
        self.text = text
        t = text.split(';')[0].strip()
        self.is_label = t.endswith(':')
        self.is_dir = t.startswith('.')
        self.dst = set(); self.src = set(); self.kind = 'other'; self.nstates = 1
        self.srcC = set(); self.srcAB = set(); self.stdata = set()
        self.target = None
        if self.is_label or self.is_dir or not t:
            self.kind = 'none'; self.nstates = 0
            self.mn = ''
            return
        parts = t.split(None, 1)
        mn = parts[0]; self.mn = mn
        rest = parts[1] if len(parts) > 1 else ''
        ops = [o.strip() for o in rest.split(',')] if rest else []
        mods = ''
        if ops:
            sp = ops[-1].split(None, 1)
        m = re.search(r'\s(op_sel|op_sel_hi|neg_lo|neg_hi|offset|offset0|offset1|offen|lds|sc0|sc1|nt|clamp|row_|quad_perm|bitop3|cbsz|abid|blgp|mul:|div:|dst_sel|src0_sel|bound_ctrl)', ' ' + rest)
        if m:
            core = (' ' + rest)[:m.start()].strip(); mods = (' ' + rest)[m.start():]
        else:
            core = rest
        ops = [o.strip() for o in core.split(',')] if core else []
        self.mods = mods
        R = lambda lst: set(r for o in lst for r in regs_of(o))
        if mn == 's_nop':
            self.kind = 'nop'; self.nstates = int(ops[0]) + 1
        elif mn.startswith('v_mfma'):
            self.kind = 'mfma'; self.dst = R(ops[:1]); self.srcAB = R(ops[1:3]); self.srcC = R(ops[3:4]); self.src = self.srcAB | self.srcC
            self.passes = 8 if '32x32' in mn else 4
        elif mn.startswith('v_cmp'):
            self.kind = 'valu'; self.dst = R(ops[:1]); self.src = R(ops[1:])
        elif mn.startswith('v_permlane') and 'swap' in mn:
            self.kind = 'valu'; self.dst = R(ops[:2]); self.src = R(ops[:2])
        elif mn.startswith('v_'):
            self.kind = 'valu'
            nd = 2 if ('_co_' in mn) else 1
            self.dst = R(ops[:nd]); self.src = R(ops[nd:])
            if mn.startswith(('v_fmac', 'v_dot2c', 'v_mac', 'v_writelane')): self.src |= R(ops[:1])
            if mn.startswith('v_cndmask') and len(ops) == 3: self.src.add(('s', 'vcc'))
        elif mn.startswith('ds_'):
            self.kind = 'ds'
            if mn.startswith('ds_read') or 'rtn' in mn or mn.startswith(('ds_bpermute', 'ds_permute', 'ds_swizzle')):
                self.dst = R(ops[:1]); self.src = R(ops[1:])
            else:
                self.src = R(ops); self.stdata = R(ops[1:])
            if 'addtid' in mn: self.src.add(('s', 'm0'))
        elif mn.startswith(('buffer_', 'global_')):
            self.kind = 'vmem'
            if ' lds' in mods:
                self.src = R(ops); self.src.add(('s', 'm0')); self.ldsdma = True
            elif 'load' in mn:
                self.dst = R(ops[:1]); self.src = R(ops[1:])
            else:
                self.src = R(ops)
                self.stdata = R(ops[:1]) if mn.startswith('buffer_') else R(ops[1:2])
        elif mn.startswith('s_'):
            self.kind = 'salu'
            if mn.startswith(('s_cbranch', 's_branch')):
                self.kind = 'branch'; self.target = ops[0]
            elif mn.startswith(('s_cmp', 's_bitcmp')):
                self.src = R(ops)
            elif mn.startswith(('s_waitcnt', 's_barrier', 's_setprio', 's_endpgm', 's_sleep')):
                pass
            else:
                self.dst = R(ops[:1]); self.src = R(ops[1:])
                if 'saveexec' in mn: self.dst.add(('s', 'exec'))

def need_states(p, c):
    n = 0
    vd = {r for r in p.dst if r[0] == 'v'}
    sd = {r for r in p.dst if r[0] == 's'}
    if p.kind == 'valu':
        if c.kind == 'mfma' and vd & c.src: n = max(n, 2)
        if c.kind == 'valu' and p.mn.startswith(TRANS) and vd & c.src: n = max(n, 1)
        if c.kind == 'valu' and p.mn.startswith('v_dot2') and (vd & c.src or vd & c.dst):
            if not (c.mn == p.mn and not (vd & c.src - c.dst) and c.mn.startswith('v_dot2c')): n = max(n, 3)
        if c.kind == 'valu' and c.mn.startswith(('v_readfirstlane', 'v_readlane')) and vd & c.src: n = max(n, 1)
        if c.kind == 'valu' and c.mn.startswith('v_permlane') and vd & c.src: n = max(n, 2)
        if c.kind == 'vmem' and sd & c.src: n = max(n, 5)
        if c.kind == 'valu' and sd & c.src: n = max(n, 2)
        if c.kind == 'valu' and c.mn.startswith(('v_readlane', 'v_readfirstlane', 'v_writelane')) and ('s', 'exec') in sd: n = max(n, 4)
    if p.kind == 'mfma':
        lat = p.passes + 4
        if c.kind in ('valu', 'vmem', 'ds') and (vd & c.src or vd & c.dst): n = max(n, lat)
        if c.kind == 'mfma':
            if vd & c.srcAB: n = max(n, lat)
            if vd & c.srcC and not (c.srcC == p.dst and c.mn == p.mn): n = max(n, p.passes + 2)
            if vd & c.dst and not (c.dst == p.dst): n = max(n, p.passes + 2)
        if c.kind == 'valu' and p.srcC & c.dst: n = max(n, 7 if p.passes == 4 else 15)
    if p.kind == 'salu' and ('s', 'm0') in sd:
        if (c.kind == 'vmem' and getattr(c, 'ldsdma', False)) or (c.kind == 'ds' and 'addtid' in c.mn): n = max(n, 1)
    if p.kind in ('vmem', 'ds') and len(p.stdata) > 2 and c.kind == 'valu' and p.stdata & c.dst: n = max(n, 2)
    return n

WINDOW = 16

def fix_hazards(lines):
    ins = [Ins(l) for l in lines]
    out = []
    nins = 0
    for c in ins:
        if c.kind != 'none':
            dist = 0; need = 0
            for p in reversed(out):
                if dist >= WINDOW: break
                if p.kind == 'none': continue
                if p.kind == 'branch' and p.mn == 's_branch': break
                if p.mn == 's_endpgm': break
                k = need_states(p, c) - dist
                if k > need: need = k
                dist += p.nstates
            if need > 0:
                out.append(Ins(f's_nop {need - 1}')); nins += 1
        out.append(c)
    labels = {i.text.split(';')[0].strip()[:-1]: n for n, i in enumerate(out) if i.is_label}
    probs = []
    for n, b in enumerate(out):
        if b.kind == 'branch' and b.target in labels:
            before = []
            d = 0
            for p in reversed(out[:n]):
                if d >= WINDOW: break
                if p.kind == 'none': continue
                if p.kind == 'branch' and p.mn == 's_branch': break
                before.append((p, d + 1)); d += p.nstates
            d2 = 0
            for c in out[labels[b.target]:]:
                if d2 >= WINDOW: break
                if c.kind == 'none': continue
                for p, dp in before:
                    if need_states(p, c) > dp + d2:
                        probs.append((p.text, b.text, c.text))
                if c.kind == 'branch' and c.mn == 's_branch': break
                d2 += c.nstates
    if probs:
        for p in probs: print('HAZARD across branch:', p)
        raise SystemExit('hazards across branches')
    return [i.text for i in out], nins

class A:
    def __init__(self):
        self.lines = []
        self.n = 0
    def __call__(self, s):
        for l in s.split('\n'):
            l = l.strip()
            if l: self.lines.append(l)
    def label(self, base='L'):
        self.n += 1
        return f'{base}_{self.n}'
    def text(self):
        ls, nins = fix_hazards(self.lines)
        self.nops = nins
        return '\n'.join(l if l.endswith(':') else '    ' + l for l in ls) + '\n'

def interleave(main, fill, per=1, start=0):
    out = []; k = 0
    for i, m in enumerate(main):
        out.append(m)
        if i >= start:
            for _ in range(per):
                if k < len(fill):
                    out.append(fill[k]); k += 1
    out.extend(fill[k:])
    return out

def vr(b, n=1):
    return f'v{b}' if n == 1 else f'v[{b}:{b+n-1}]'
def sr(b, n=1):
    return f's{b}' if n == 1 else f's[{b}:{b+n-1}]'
```

```python
import sys
from asmx import A, interleave, vr, sr

NAME = 'parallel_sum__linear_attn_block__dense_activation_mish__prompt_kernel'

class Cfg:
    stamps = False
    stagger = (1, 3)
    rp_issue, rp_store, rp_flag = 1, 3, 5
    poll_limit = 100000
    p2map = 0

WS_EPOCH = 0
WS_KVF   = 0x1000
WS_ROWF  = 0x2000
WS_RPF   = 0x6000
WS_ALIVE = 0x8000
WS_KVP   = 0x10000
WS_A     = 0x100000
WS_B2    = 0xA00000
WS_STAMP = 0x1000000
WS_SIZE  = 0x10000000
OOB      = 0x7FFF0000

SZ1 = 16384 + 22528 + 8192
SZ2 = 16384 + 10240 + 16384
L_W = 16384
L_H1 = 38912
L_H2 = 26624
L_RPK = 141312
L_KVX = 143360
L_STAT = 159744
L_CSX = 160768
L_CNT = 163328
L_DUMMY = 163392
LDS_SIZE = 163840
PAIR = 35840

sWAVE, sTYPE, sG, sRB, sRG = 3, 4, 5, 6, 7
SRD_X, SRD_Q, SRD_H, SRD_WS, SRD_R, SRD_O, SRD_B1, SRD_C = 36, 40, 44, 48, 52, 56, 60, 64
sIT, sST, sXO, sQO, sHO, sDM, sDELTA, sSLOT, sT0, sTAG, sRB2, sCB, sWP = 68, 69, 70, 71, 72, 73, 74, 75, 76, 77, 78, 79, 80
sLOG2E, sEPS6, sRPV, sRPS0, sRPS1, sRPF = 81, 82, 83, 84, 85, 86
sRPD = 87
sU0, sAO, sPC = 91, 92, 93
sSTAMP = 94
sSTB = 96
vXA0, vXA1, vW = 1, 2, 3
vST = 7
vONE = 11
vP0, vP1, vT0, vT1 = 12, 13, 14, 15
ACC, CS = 16, 96
XF = [116, 132]
WF = [148, 168]
vDX, vDW, vDH = 188, 189, 192
vB1 = 194
vKVA = 201
vRPG, vRPL = 209, 210
vRPT = 212
vEP = 211
vSTAMP = 228

def f2u(x):
    import struct
    return struct.unpack('<I', struct.pack('<f', x))[0]

class Gen:
    def __init__(self, cfg):
        self.c = cfg
        self.a = A()
        self.nst = 0

    def stamp(self, idx):
        if not self.c.stamps: return
        a = self.a
        a(f's_memrealtime s[{sSTAMP}:{sSTAMP+1}]\ns_waitcnt lgkmcnt(0)')
        a(f's_mov_b32 s{sSTB + idx % 6}, s{sSTAMP}')
        if idx % 6 == 5 or idx == self.last_stamp:
            pass

    def poll(self, vaddr, vtmp, name, pre_issued=False):
        a = self.a
        L = a.label('Lpoll_' + name); Lc = a.label('Lchk_' + name); Ld = a.label('Ldone_' + name)
        a(f's_mov_b32 s8, 0')
        if pre_issued:
            a(f's_branch {Lc}')
        a(f'''{L}:
        buffer_load_dword v{vtmp}, v{vaddr}, s[{SRD_WS}:{SRD_WS+3}], 0 offen sc1
        s_waitcnt vmcnt(0)
        {Lc}:
        s_add_u32 s8, s8, 1
        s_cmp_ge_u32 s8, {self.c.poll_limit}
        s_cbranch_scc1 {Ld}
        v_cmp_ne_u32 vcc, s{sTAG}, v{vtmp}
        s_cbranch_vccnz {L}
        {Ld}:''')

    def lds_wait(self, off, val, name):
        a = self.a
        L = a.label('Llw_' + name); Ld = a.label('Llwd_' + name)
        a(f'''s_mov_b32 s8, 0
        v_mov_b32 v{vT0}, {off}
        {L}:
        ds_read_b32 v{vT1}, v{vT0}
        s_add_u32 s8, s8, 1
        s_cmp_ge_u32 s8, {self.c.poll_limit}
        s_cbranch_scc1 {Ld}
        s_waitcnt lgkmcnt(0)
        v_cmp_gt_u32 vcc, {val}, v{vT1}
        s_cbranch_vccnz {L}
        {Ld}:
        s_waitcnt lgkmcnt(0)''')

    def flag_store(self, soff_expr_reg, nlanes=1, imm=0):
        a = self.a
        a(f'''v_lshlrev_b32 v{vT0}, 2, v0
        v_mov_b32 v{vT1}, s{sTAG}
        s_mov_b64 exec, {(1 << nlanes) - 1}
        buffer_store_dword v{vT1}, v{vT0}, s[{SRD_WS}:{SRD_WS+3}], s{soff_expr_reg} offen offset:{imm} sc1
        s_mov_b64 exec, -1''')

    def srd(self, r, ptr, size):
        self.a(f's_mov_b32 s{r}, s{ptr}\ns_mov_b32 s{r+1}, s{ptr+1}\ns_mov_b32 s{r+2}, {size}\ns_mov_b32 s{r+3}, 0x20000')

    def kmap(self, vd, vrow, vt):
        self.a(f'''v_and_b32 v{vt}, 4, v{vrow}
        v_lshlrev_b32 v{vt}, 1, v{vt}
        v_and_or_b32 v{vd}, v{vrow}, 51, v{vt}
        v_bfe_u32 v{vt}, v{vrow}, 3, 1
        v_lshl_or_b32 v{vd}, v{vt}, 2, v{vd}''')

    def entry(self):
        a = self.a; c = self.c
        a(f'''s_cmp_ge_u32 s2, 256
        s_cbranch_scc1 L_end
        s_load_dwordx16 s[16:31], s[0:1], 0
        s_load_dwordx4 s[32:35], s[0:1], 64
        s_getpc_b64 s[{SRD_C}:{SRD_C+1}]
        L_pc:
        v_lshrrev_b32 v1, 6, v0
        s_lshr_b32 s9, s2, 3
        v_and_b32 v0, 63, v0
        v_readfirstlane_b32 s{sWAVE}, v1
        s_and_b32 s8, s9, 3
        s_mov_b32 s{SRD_C+2}, L_code_end-L_pc
        s_mov_b32 s{SRD_C+3}, 0x20000
        s_lshl_b32 s8, s8, 13
        s_lshl_b32 s10, s{sWAVE}, 15
        s_add_u32 s8, s8, s10
        v_lshl_add_u32 v2, v0, 7, s8
        s_cmp_ge_u32 s10, L_code_end-L_pc
        s_cbranch_scc1 L_nopf
        buffer_load_dword v255, v2, s[{SRD_C}:{SRD_C+3}], 0 offen
        L_nopf:''')
        a(f'''s_and_b32 s8, s2, 7
        s_and_b32 s10, s8, 1
        s_lshl_b32 s10, s10, 3
        s_and_b32 s11, s9, 7
        s_add_u32 s{sRB}, s10, s11
        s_lshr_b32 s12, s9, 3
        s_and_b32 s{sTYPE}, s12, 1
        s_lshr_b32 s13, s12, 1
        s_and_b32 s14, s8, 6
        s_add_u32 s{sG}, s14, s13
        s_and_b32 s{sRG}, s{sWAVE}, 1''')
        sa, sb = c.stagger
        a(f'''s_mul_i32 s11, s11, {sa}
        s_mul_i32 s12, s12, {sb}
        s_add_u32 s11, s11, s12
        s_mul_i32 s12, s11, 6554
        s_lshr_b32 s12, s12, 16
        s_mul_i32 s12, s12, 10
        s_sub_u32 s{sST}, s11, s12''')
        if c.p2map == 0:
            a(f'''s_lshl_b32 s10, s10, 1
            s_lshl_b32 s14, s14, 1
            s_add_u32 s10, s10, s14
            s_and_b32 s11, s9, 3
            s_add_u32 s{sRB2}, s10, s11
            s_lshr_b32 s{sCB}, s9, 2''')
        else:
            a(f'''s_lshl_b32 s10, s10, 1
            s_and_b32 s14, s8, 2
            s_lshl_b32 s14, s14, 2
            s_add_u32 s10, s10, s14
            s_and_b32 s11, s9, 7
            s_add_u32 s{sRB2}, s10, s11
            s_lshr_b32 s11, s9, 3
            s_and_b32 s14, s8, 4
            s_add_u32 s{sCB}, s11, s14''')
        a(f'''s_mov_b32 s{sLOG2E}, {f2u(1.4426950408889634)}
        s_mov_b32 s{sEPS6}, {f2u(1e-6)}
        s_mov_b32 s{sIT}, 0
        s_mov_b32 s{sSLOT}, 0
        v_mov_b32 v{vONE}, 0x3f803f80''')
        a(f'''v_and_b32 v15, 15, v0
        v_lshrrev_b32 v14, 4, v0
        v_lshrrev_b32 v3, 1, v15
        v_xor_b32 v3, v3, v14
        v_lshlrev_b32 v3, 4, v3
        v_lshl_add_u32 v3, v15, 7, v3
        s_lshl_b32 s8, s{sRG}, 13
        v_add_u32 v{vXA0}, s8, v3
        v_xor_b32 v{vXA1}, 64, v{vXA0}''')
        a(f'''v_lshrrev_b32 v12, 5, v0
        v_lshlrev_b32 v12, 4, v12
        v_and_b32 v3, 1, v14
        v_lshl_add_u32 v12, v3, 2, v12
        v_bfe_u32 v3, v0, 2, 2
        v_add_u32 v12, v12, v3
        v_and_b32 v13, 3, v0
        v_lshlrev_b32 v13, 3, v13''')
        a(f'''s_cmp_ge_u32 s{sWAVE}, 4
        s_cbranch_scc0 L_heavy
        s_sub_u32 s{sWP}, s{sWAVE}, 4
        s_cmp_eq_u32 s{sTYPE}, 0
        s_cbranch_scc0 L_h2b''')

    def srds_common(self):
        a = self.a
        a('s_waitcnt lgkmcnt(0)')
        self.srd(SRD_WS, 34, WS_SIZE)

    def load_epoch(self):
        a = self.a
        a(f'buffer_load_dword v{vEP}, off, s[{SRD_WS}:{SRD_WS+3}], 0 sc1')

    def make_tag(self):
        a = self.a
        a(f'''v_readfirstlane_b32 s8, v{vEP}
        s_mul_i32 s8, s8, 0x9E3779B1
        s_add_u32 s{sTAG}, s8, 0x7F4A7C15''')

    def dma_list(self, typ):
        L = []
        def one(ldsoff, srd, sbase, soff, v):
            s = f's_add_u32 m0, s{sDM}, {ldsoff}\n'
            if soff:
                s += f's_add_u32 s{sT0}, s{sbase}, {soff}\n'; so = sT0
            else:
                s += 's_nop 0\n'; so = sbase
            s += f'buffer_load_dwordx4 v{v}, s[{srd}:{srd+3}], s{so} offen lds'
            return s
        for q in range(4):
            L.append(one(q * 4096, SRD_X, sXO, q * 40960, vDX))
        if typ == 1:
            for q in range(2):
                L.append(one(L_H1 + q * 4096, SRD_H, sHO, q * 32 * 3072, vDH))
            for q in range(2):
                L.append(one(L_W + q * 4096, SRD_Q, sQO, 0, vDW + q))
                L.append(one(L_W + q * 4096 + 11 * 1024, SRD_Q, sQO, 32 * 3840, vDW + q))
            C = [one(L_W + 8192, SRD_Q, sQO, 0, vDW + 2), one(L_W + 8192 + 11 * 1024, SRD_Q, sQO, 32 * 3840, vDW + 2)]
            lim = 3
        else:
            for q in range(4):
                L.append(one(L_H2 + q * 4096, SRD_H, sHO, q * 16 * 3072, vDH))
            for q in range(2):
                L.append(one(L_W + q * 4096, SRD_Q, sQO, 0, vDW + q))
            C = [one(L_W + 8192, SRD_Q, sQO, 0, vDW + 2)]
            lim = 2
        return L, C, lim

    def dma_offsets(self):
        return f'''s_lshl_b32 s8, s{sST}, 7
        s_add_u32 s{sXO}, s87, s8
        s_mul_i32 s8, s{sST}, {64*3840}
        s_add_u32 s{sQO}, s88, s8
        s_mul_i32 s8, s{sST}, {64*3072}
        s_add_u32 s{sHO}, s89, s8
        s_add_u32 s{sST}, s{sST}, 1
        s_cmp_eq_u32 s{sST}, 10
        s_cselect_b32 s{sST}, 0, s{sST}'''

    def light_prologue(self, typ):
        a = self.a
        SZ = SZ1 if typ == 1 else SZ2
        a(f'''s_and_b32 s8, s{sWP}, 1
        s_lshl_b32 s9, s8, 2
        v_add_u32 v3, s9, v14
        v_and_b32 v4, 7, v0
        v_xor_b32 v3, v3, v4
        v_lshrrev_b32 v5, 3, v0
        v_mul_u32_u24 v6, 1280, v5
        v_lshl_add_u32 v{vDX}, v3, 4, v6''')
        if typ == 1:
            a(f'''v_and_b32 v3, 3, v5
            v_lshrrev_b32 v6, 2, v5
            v_lshl_add_u32 v3, v6, 3, v3
            v_mul_u32_u24 v3, 3072, v3
            v_lshrrev_b32 v6, 1, v4
            v_xor_b32 v6, v6, v14
            v_lshl_add_u32 v3, v6, 5, v3
            v_and_b32 v6, 1, v0
            v_lshl_add_u32 v{vDH}, v6, 4, v3''')
            for q in range(3):
                a(f'''s_lshl_b32 s9, s{sWP}, 6
                s_add_u32 s9, s9, {q*256}
                v_add_u32 v3, s9, v0
                v_mul_u32_u24 v4, 2979, v3
                v_lshrrev_b32 v4, 16, v4
                v_mul_u32_u24 v5, 22, v4
                v_sub_u32 v3, v3, v5''')
                self.kmap(5, 4, 6)
                a(f'''v_mul_u32_u24 v5, 3840, v5
                v_lshl_add_u32 v5, v3, 4, v5
                v_cmp_lt_u32 vcc, 10, v3
                v_add_u32 v6, {1280 - 176}, v5
                v_cndmask_b32 v5, v5, v6, vcc
                v_cmp_eq_u32 vcc, 10, v3
                v_cmp_eq_u32 s[10:11], 21, v3
                s_or_b64 vcc, vcc, s[10:11]
                v_mov_b32 v6, {OOB}
                v_cndmask_b32 v{vDW+q}, v5, v6, vcc''')
            a(f'''s_mul_i32 s88, s{sG}, 160
            s_add_u32 s88, s88, 1280
            s_lshr_b32 s9, s{sWP}, 1
            s_lshl_b32 s9, s9, 4
            s_lshl_b32 s8, s8, 2
            s_add_u32 s9, s9, s8
            s_mul_i32 s9, s9, 3072
            s_mul_i32 s89, s{sG}, 384
            s_add_u32 s89, s89, s9''')
        else:
            a(f'''s_lshl_b32 s9, s8, 2
            v_add_u32 v3, s9, v14
            v_lshrrev_b32 v4, 1, v15
            v_xor_b32 v3, v3, v4
            s_lshl_b32 s9, s8, 3
            v_add_u32 v4, s9, v14
            v_mul_u32_u24 v4, 3072, v4
            v_lshl_add_u32 v3, v3, 5, v4
            v_and_b32 v6, 1, v0
            v_lshl_add_u32 v{vDH}, v6, 4, v3''')
            for q in range(3):
                a(f'''s_lshl_b32 s9, s{sWP}, 6
                s_add_u32 s9, s9, {q*256}
                v_add_u32 v3, s9, v0
                v_mul_u32_u24 v4, 6554, v3
                v_lshrrev_b32 v4, 16, v4
                v_mul_u32_u24 v5, 10, v4
                v_sub_u32 v3, v3, v5''')
                self.kmap(5, 4, 6)
                a(f'''v_mul_u32_u24 v5, 3840, v5
                v_lshl_add_u32 v{vDW+q}, v3, 4, v5''')
            a(f'''s_mul_i32 s88, s{sG}, 160
            s_lshr_b32 s9, s{sWP}, 1
            s_mul_i32 s9, s9, {4*3072}
            s_mul_i32 s89, s{sG}, 384
            s_add_u32 s89, s89, s9
            s_add_u32 s89, s89, 128''')
        a(f'''s_mul_i32 s87, s{sRB}, {128*1280}
        s_mul_i32 s9, s{sWP}, 10240
        s_add_u32 s87, s87, s9
        s_lshl_b32 s{sDM}, s{sWP}, 10''')
        self.srds_common()
        self.srd(SRD_X, 16, 2048*1280)
        self.srd(SRD_Q, 18, 640*3840)
        self.srd(SRD_H, 24, 640*3072)
        L, C, lim = self.dma_list(typ)
        Lp = a.label('Lpro'); Ls = a.label('Lproskip'); Lx = a.label('Lprox')
        a(f's_mov_b32 s9, 0\n{Lp}:')
        a(self.dma_offsets())
        for d in L: a(d)
        a(f's_cmp_lt_u32 s{sWP}, {lim}\ns_cbranch_scc0 {Ls}')
        for d in C: a(d)
        a(f'''{Ls}:
        s_add_u32 s{sDM}, s{sDM}, {SZ}
        s_cmp_eq_u32 s9, 0
        s_cbranch_scc0 {Lx}''')
        self.load_epoch()
        self.srd(SRD_B1, 26, 3072)
        hp = sWP
        a(f'''s_lshr_b32 s8, s{sWP}, 1
        s_lshl_b32 s8, s8, 6
        s_mul_i32 s10, s{sG}, 384
        s_add_u32 s8, s8, s10
        {"s_add_u32 s8, s8, 256" if typ == 2 else ""}
        v_lshlrev_b32 v3, 3, v14
        buffer_load_dwordx2 v[{vB1}:{vB1+1}], v3, s[{SRD_B1}:{SRD_B1+3}], s8 offen
        buffer_load_dwordx2 v[{vB1+2}:{vB1+3}], v3, s[{SRD_B1}:{SRD_B1+3}], s8 offen offset:32
        {Lx}:
        s_add_u32 s9, s9, 1
        s_cmp_lt_u32 s9, 3
        s_cbranch_scc1 {Lp}
        s_lshl_b32 s{sDM}, s{sWP}, 10''')
        a(f's_lshr_b32 s8, s{sWP}, 1\ns_lshl_b32 s8, s8, 1')
        if typ == 1:
            a(f'''v_bfe_u32 v5, v12, 1, 2
            v_lshl_add_u32 v6, v12, 7, v13
            v_xor_b32 v5, s8, v5
            v_lshl_add_u32 v{vW}, v5, 5, v6
            v_add_u32 v{vW}, {L_H1}, v{vW}
            v_xor_b32 v{vW+1}, 32, v{vW}''')
        else:
            a(f'''s_add_u32 s8, s8, 4
            v_and_b32 v5, 7, v12
            v_lshl_add_u32 v6, v12, 8, v13
            v_xor_b32 v5, s8, v5
            v_lshl_add_u32 v{vW}, v5, 5, v6
            v_add_u32 v{vW}, {L_H2}, v{vW}
            v_xor_b32 v{vW+1}, 32, v{vW}''')
        self.zero_acc(2)
        a(f's_waitcnt vmcnt(20)')
        self.make_tag()

    def zero_acc(self, nt):
        a = self.a
        for i in range(16 * nt): a(f'v_mov_b32 v{ACC+i}, 0')
        for i in range(4 * nt): a(f'v_mov_b32 v{CS+i}, 0')

    def frag_reads(self, role, ks, buf):
        L = []
        xa = vXA0 if ks == 0 else vXA1
        xs = [f'ds_read_b128 {vr(XF[buf]+4*t, 4)}, v{xa} offset:{2048*t}' for t in range(4)]
        ws = []
        for T, (vb, off) in enumerate(role['tiles']):
            for j in range(2):
                ws.append(f'ds_read_b64_tr_b16 {vr(WF[buf]+4*T+2*j, 2)}, v{vb} offset:{off + role["rs8"]*(4*ks+j)}')
        L = [xs[0]] + ws[:2] + [xs[1]] + ws[2:4] + xs[2:] + ws[4:]
        return L

    def mfmas(self, role, buf):
        nt = role['nt']; L = []
        for t in range(4):
            for T in range(nt):
                d = vr(ACC + 4*(t*nt + T), 4); x = vr(XF[buf]+4*t, 4); w = vr(WF[buf]+4*T, 4)
                A_, B_ = (x, w) if role['orient'] == 1 else (w, x)
                L.append(f'v_mfma_f32_16x16x32_bf16 {d}, {A_}, {B_}, {d}')
        return L

    def colsum(self, role, buf):
        L = []
        one = vr(role['ones'], 4)
        for T in range(role['nt']):
            d = vr(CS + 4*T, 4); w = vr(WF[buf]+4*T, 4)
            A_, B_ = (one, w) if role['orient'] == 1 else (w, one)
            L.append(f'v_mfma_f32_16x16x32_bf16 {d}, {A_}, {B_}, {d}')
        return L

    def dots(self, role, buf):
        L = []
        for r in range(4):
            for i, t in enumerate(role['stat']):
                x = XF[buf] + 4*t + r
                L.append(f'v_dot2c_f32_bf16 v{vST+2*i}, v{vONE}, v{x}')
                L.append(f'v_dot2c_f32_bf16 v{vST+2*i+1}, v{x}, v{x}')
        return L

    def main_loop(self, role):
        a = self.a; c = self.c
        typ = role['typ']; SZ = SZ1 if typ == 1 else SZ2
        nm = role['name']
        bases = [vXA0, vXA1] + sorted(set(vb for vb, _ in role['tiles']))
        a('s_waitcnt lgkmcnt(0)\ns_barrier')
        for r in self.frag_reads(role, 0, 0): a(r)
        Lp = f'L_loop_{nm}'
        a(f'{Lp}:\ns_waitcnt lgkmcnt(0)')
        m = self.mfmas(role, 0)
        fill = self.frag_reads(role, 1, 1) + self.dots(role, 0)
        per = 2 if role['dma'] else 1
        body = interleave(m, fill, per=(2 if len(fill) > len(m) else 1))
        for l in body: a(l)
        Ls = a.label('Lcs')
        a(f's_cmp_eq_u32 s{sRG}, 0\ns_cbranch_scc0 {Ls}')
        for l in self.colsum(role, 0): a(l)
        a(f'{Ls}:')
        a(f'''s_add_u32 s{sSLOT}, s{sSLOT}, 1
        s_cmp_eq_u32 s{sSLOT}, 3
        s_cselect_b32 s{sDELTA}, -2, 1
        s_cselect_b32 s{sSLOT}, 0, s{sSLOT}
        s_mul_i32 s{sDELTA}, s{sDELTA}, {SZ}''')
        for b in bases: a(f'v_add_u32 v{b}, s{sDELTA}, v{b}')
        if role['dma']:
            Lw = a.label('Lvw')
            a(f'''s_cmp_eq_u32 s{sIT}, 8
            s_cbranch_scc0 {Lw}
            s_waitcnt vmcnt(0)
            {Lw}:
            s_waitcnt vmcnt(10) lgkmcnt(0)''')
        else:
            a('s_waitcnt lgkmcnt(0)')
        a('s_barrier')
        if role.get('repack'): self.repack_blocks()
        m = self.mfmas(role, 1)
        reads = self.frag_reads(role, 0, 0)
        if role['dma']:
            L, C, lim = self.dma_list(typ)
            Ln = a.label('Lnodma'); Lj = a.label('Lj'); Lk = a.label('Lk')
            body = interleave(m[:4], reads, per=2)
            for l in body: a(l)
            a(f's_cmp_lt_u32 s{sIT}, 7\ns_cbranch_scc0 {Ln}')
            a(self.dma_offsets())
            body = interleave(L[:4], m[4:], per=1)
            for l in body: a(l)
            for d in L[4:]: a(d)
            a(f's_cmp_lt_u32 s{sWP}, {lim}\ns_cbranch_scc0 {Lk}')
            for d in C: a(d)
            a(f'{Lk}:\ns_add_u32 s{sDM}, s{sDM}, s{sDELTA}\ns_branch {Lj}\n{Ln}:')
            for l in m[4:]: a(l)
            a(f'{Lj}:')
        else:
            fill = reads + self.dots(role, 1)
            body = interleave(m, fill, per=(2 if len(fill) > len(m) else 1))
            for l in body: a(l)
        Ls = a.label('Lcs')
        a(f's_cmp_eq_u32 s{sRG}, 1\ns_cbranch_scc0 {Ls}')
        for l in self.colsum(role, 1): a(l)
        a(f'''{Ls}:
        s_add_u32 s{sIT}, s{sIT}, 1
        s_cmp_lt_u32 s{sIT}, 10
        s_cbranch_scc1 {Lp}
        s_waitcnt lgkmcnt(0)''')

    def repack_setup(self):
        a = self.a
        a(f'''s_lshl_b32 s8, s{sWAVE}, 8
        s_add_u32 s8, s8, s2
        s_cmp_lt_u32 s8, 680
        s_cselect_b32 s{sRPV}, 1, 0
        s_min_u32 s8, s8, 679
        s_mul_i32 s9, s8, 6554
        s_lshr_b32 s9, s9, 16
        s_mul_i32 s10, s9, 10
        s_sub_u32 s10, s8, s10
        s_mul_i32 s11, s9, 3856
        s_lshr_b32 s11, s11, 16
        s_mul_i32 s12, s11, 17
        s_sub_u32 s12, s9, s12''')
        a(f'''s_lshl_b32 s13, s9, 6
        s_lshl_b32 s14, s10, 2
        s_add_u32 s13, s13, s14
        s_add_u32 s{sRPF}, s13, {WS_RPF}''')
        for tt in range(4):
            a(f'''s_lshl_b32 s13, s10, 2
            s_add_u32 s13, s13, {tt}
            s_mul_i32 s14, s13, 13108
            s_lshr_b32 s14, s14, 16
            s_mul_i32 s15, s14, 5
            s_sub_u32 s13, s13, s15
            s_mul_i32 s14, s14, 68
            s_add_u32 s14, s14, s9
            s_mul_i32 s14, s14, 5
            s_add_u32 s14, s14, s13
            s_lshl_b32 s14, s14, 10
            s_add_u32 s{sRPD+tt}, s14, {WS_B2}''')
        a(f'''s_mul_i32 s13, s11, 384
        s_lshl_b32 s14, s12, 5
        s_add_u32 s15, s14, 64
        s_add_u32 s8, s14, {192 + 64 - 128}
        s_cmp_ge_u32 s12, 4
        s_cselect_b32 s15, s8, s15
        s_sub_u32 s8, s14, 256
        s_cmp_ge_u32 s12, 8
        s_cselect_b32 s15, s8, s15
        s_sub_u32 s8, s14, {320 - 192}
        s_cmp_ge_u32 s12, 10
        s_cselect_b32 s15, s8, s15
        s_mul_i32 s9, s11, 160
        s_sub_u32 s8, s14, 384
        s_cmp_ge_u32 s12, 12
        s_cselect_b32 s13, s9, s13
        s_cselect_b32 s15, s8, s15
        s_sub_u32 s8, s14, {448 - 80}
        s_cmp_ge_u32 s12, 14
        s_cselect_b32 s15, s8, s15
        s_cmp_eq_u32 s12, 16
        s_cselect_b32 s15, 64, s15
        s_cselect_b32 s8, 80, 16
        s_add_u32 s13, s13, s15
        s_mul_i32 s{sRPS0}, s13, 1280
        s_lshl_b32 s10, s10, 7
        s_add_u32 s{sRPS0}, s{sRPS0}, s10
        s_mul_i32 s8, s8, 1280
        s_add_u32 s{sRPS1}, s{sRPS0}, s8''')
        a(f'''s_mov_b32 s{SRD_R+2}, {1536*1280}
        s_cmp_ge_u32 s12, 12
        s_cselect_b32 s{SRD_R}, s20, s28
        s_cselect_b32 s{SRD_R+1}, s21, s29
        s_cselect_b32 s{SRD_R+2}, {640*1280}, s{SRD_R+2}
        s_mov_b32 s{SRD_R+3}, 0x20000''')
        a(f'''v_lshrrev_b32 v3, 3, v0
        v_mul_u32_u24 v3, 1280, v3
        v_and_b32 v4, 7, v0
        v_lshl_add_u32 v{vRPG}, v4, 4, v3
        v_bfe_u32 v3, v0, 2, 2
        v_lshl_add_u32 v3, v14, 2, v3
        v_lshl_add_u32 v3, v3, 7, v13
        s_lshl_b32 s8, s{sWAVE}, 12
        s_add_u32 s8, s8, {L_RPK}
        v_add_u32 v{vRPL}, s8, v3''')

    def repack_blocks(self):
        a = self.a; c = self.c
        L1 = a.label('Lrp1'); L2 = a.label('Lrp2'); L3 = a.label('Lrp3'); L4 = a.label('Lrp4')
        a(f'''s_cmp_eq_u32 s{sRPV}, 0
        s_cbranch_scc1 {L3}
        s_cmp_eq_u32 s{sIT}, {c.rp_issue}
        s_cbranch_scc0 {L1}
        s_lshl_b32 s8, s{sWAVE}, 12
        s_add_u32 s8, s8, {L_RPK}''')
        for n in range(4):
            base = sRPS0 if n < 2 else sRPS1
            a(f'''s_add_u32 m0, s8, {n*1024}
            s_add_u32 s9, s{base}, {(n & 1) * 10240}
            buffer_load_dwordx4 v{vRPG}, s[{SRD_R}:{SRD_R+3}], s9 offen lds''')
        a(f'''{L1}:
        s_cmp_eq_u32 s{sIT}, {c.rp_store}
        s_cbranch_scc0 {L2}
        s_waitcnt vmcnt(0)''')
        for tt in range(4):
            for jj in range(2):
                a(f'ds_read_b64_tr_b16 {vr(vRPT+4*tt+2*jj, 2)}, v{vRPL} offset:{2048*jj + 32*tt}')
        a(f'v_lshlrev_b32 v{vT0}, 4, v0\ns_waitcnt lgkmcnt(0)')
        for tt in range(4):
            a(f'buffer_store_dwordx4 {vr(vRPT+4*tt, 4)}, v{vT0}, s[{SRD_WS}:{SRD_WS+3}], s{sRPD+tt} offen sc1')
        a(f'''{L2}:
        s_cmp_eq_u32 s{sIT}, {c.rp_flag}
        s_cbranch_scc0 {L3}
        s_waitcnt vmcnt(0)''')
        self.flag_store(sRPF)
        a(f'''s_cmp_eq_u32 s{sWAVE}, 0
        s_cbranch_scc0 {L3}
        s_lshl_b32 s8, s2, 2''')
        a(f's_add_u32 s8, s8, {WS_ALIVE}')
        self.flag_store(8)
        a(f'{L3}:')

    def heavy_common(self):
        a = self.a
        a('L_heavy:')
        self.srds_common()
        self.load_epoch()
        self.repack_setup()
        a(f'''v_mov_b32 v3, 0
        v_mov_b32 v4, {L_CNT}
        v_lshl_add_u32 v4, v0, 2, v4
        s_mov_b64 exec, 0xffff
        ds_write_b32 v4, v3
        s_mov_b64 exec, -1''')
        for i in range(4): a(f'v_mov_b32 v{vST+i}, 0')
        a(f'''s_lshr_b32 s{sWP}, s{sWAVE}, 1
        s_cmp_eq_u32 s{sTYPE}, 0
        s_cbranch_scc0 L_heavy2''')

    def kv_prologue(self):
        a = self.a
        a(f'''s_mul_i32 s8, s{sWP}, 80
        s_add_u32 s8, s8, {L_W}
        v_mul_u32_u24 v5, 352, v12
        v_add3_u32 v{vW}, v5, v13, s8
        v_cmp_lt_u32 vcc, 8, v13
        v_mov_b32 v5, 64
        v_mov_b32 v6, 160
        v_cndmask_b32 v5, v5, v6, vcc
        v_add_u32 v{vW+1}, v5, v{vW}''')
        L1 = a.label('Lkva'); L2 = a.label('Lkvb')
        a(f'''s_mul_i32 s8, s{sWP}, 10
        v_add_u32 v5, s8, v14
        v_mul_u32_u24 v5, 200, v5
        v_mov_b32 v116, {OOB}
        s_cmp_eq_u32 s{sRG}, 0
        s_cbranch_scc0 {L1}''')
        def prod(dst, aa, b):
            if aa == 0: a('s_mov_b64 s[10:11], 0')
            elif aa == 1: a('v_cmp_le_u32 s[10:11], 1, v14')
            else: a('s_mov_b64 s[10:11], -1')
            if b == 2:
                a(f'''v_add_u32 v117, 20, v15
                v_subrev_u32 v118, 8, v15
                v_cmp_le_u32 vcc, 8, v15
                v_cndmask_b32 v117, v117, v118, vcc
                s_andn2_b64 s[14:15], vcc, s[10:11]
                v_cmp_gt_u32 vcc, 5, v15
                s_or_b64 s[14:15], s[14:15], vcc''')
            elif b == 3:
                a(f'''v_add_u32 v117, 8, v15
                v_subrev_u32 v118, 12, v15
                v_cmp_le_u32 vcc, 12, v15
                v_cndmask_b32 v117, v117, v118, vcc
                s_xnor_b64 s[14:15], vcc, s[10:11]''')
            else:
                a(f'''v_add_u32 v117, 4, v15
                s_mov_b64 s[14:15], s[10:11]''')
            if aa == 2:
                a('v_cmp_gt_u32 vcc, 2, v14\ns_and_b64 s[14:15], s[14:15], vcc')
            a(f'''v_lshl_add_u32 v117, v117, 3, v5
            v_add_u32 v117, {800*aa}, v117
            v_cndmask_b32 v{dst}, v116, v117, s[14:15]''')
        prods = self.PRODS
        for i in range(4): prod(vKVA + i, *prods[i])
        a(f's_branch {L2}\n{L1}:')
        for i in range(4): prod(vKVA + i, *prods[4 + i])
        a(f'{L2}:')
        self.zero_acc(5)
        a('s_waitcnt vmcnt(0)')
        self.make_tag()

    PRODS = [(0, 2), (0, 3), (1, 2), (1, 3), (1, 4), (2, 2), (2, 3), (2, 4)]

    def kvdest(self, dst, vn):
        a = self.a
        a(f'''v_mul_u32_u24 v116, 2622, v{vn}
        v_lshrrev_b32 v116, 16, v116
        v_mul_u32_u24 v117, 25, v116
        v_sub_u32 v117, v{vn}, v117
        v_mul_u32_u24 v118, 205, v116
        v_lshrrev_b32 v118, 10, v118
        v_lshrrev_b32 v119, 3, v116
        v_mul_u32_u24 v120, 20, v118
        v_add_u32 v120, v120, v117
        v_lshrrev_b32 v121, 4, v120
        v_and_b32 v120, 15, v120
        v_lshl_add_u32 v122, v121, 1, v119
        v_cmp_le_u32 vcc, 3, v121
        v_subbrev_co_u32 v122, vcc, 0, v122, vcc
        v_mul_u32_u24 v123, 5, v118
        v_add_u32 v123, v123, v117
        v_subrev_u32 v123, 20, v123
        v_lshrrev_b32 v124, 2, v123
        v_and_b32 v123, 3, v123
        v_lshlrev_b32 v123, 2, v123
        v_and_b32 v125, 3, v124
        v_add_u32 v123, v123, v125
        v_lshrrev_b32 v124, 2, v124
        v_lshl_add_u32 v124, v124, 1, v119
        v_add_u32 v124, 10, v124
        v_cmp_le_u32 vcc, 20, v117
        v_cndmask_b32 v122, v122, v124, vcc
        v_cndmask_b32 v120, v120, v123, vcc
        v_and_b32 v123, 3, v116
        v_lshl_add_u32 v120, v123, 4, v120
        v_lshl_add_u32 v120, v122, 6, v120
        v_bfe_u32 v123, v116, 2, 1
        v_lshl_add_u32 v120, v120, 1, v123
        v_lshlrev_b32 v120, 3, v120
        v_add_u32 v120, {L_KVX}, v120
        v_mov_b32 v123, {L_DUMMY}
        v_cmp_gt_u32 vcc, 500, v{vn}
        v_cndmask_b32 v{dst}, v123, v120, vcc''')

    def t2heavy_prologue(self):
        a = self.a
        a('L_heavy2:')
        a(f'''s_lshl_b32 s8, s{sWAVE}, 7
        v_lshl_add_u32 v127, v0, 1, s8
        v_add_u32 v128, 1, v127''')
        self.kvdest(205, 127)
        self.kvdest(206, 128)
        a(f'''s_cmp_eq_u32 s{sWP}, 0
        s_cbranch_scc0 L_h4''')
        a(f'''v_mul_u32_u24 v5, 160, v12
        v_add_u32 v5, v5, v13
        v_add_u32 v{vW}, {L_W}, v5''')
        self.zero_acc(5)
        a('s_waitcnt vmcnt(0)')
        self.make_tag()

    def h4_prologue(self):
        a = self.a
        a('L_h4:')
        self.srd(SRD_B1, 26, 3072)
        a(f'''s_mul_i32 s8, s{sG}, 384
        s_add_u32 s8, s8, 128
        v_lshlrev_b32 v3, 3, v14''')
        for T in range(4):
            a(f'buffer_load_dwordx2 v[{vB1+2*T}:{vB1+2*T+1}], v3, s[{SRD_B1}:{SRD_B1+3}], s8 offen offset:{32*T}')
        a(f'''v_and_b32 v5, 7, v12
        v_lshl_add_u32 v6, v12, 8, v13
        v_lshl_add_u32 v{vW}, v5, 5, v6
        v_add_u32 v{vW}, {L_H2}, v{vW}
        v_xor_b32 v{vW+1}, 32, v{vW}
        v_xor_b32 v{vW+2}, 64, v{vW}
        v_xor_b32 v{vW+3}, 96, v{vW}''')
        self.zero_acc(4)
        a('s_waitcnt vmcnt(0)')
        self.make_tag()

    def exchange(self, role):
        a = self.a
        S0, Q0, S1, Q1 = vST, vST+1, vST+2, vST+3
        if role['stat']:
            t0 = role['stat'][0]
            a(f'''s_nop 2
            v_permlane16_swap_b32 v{S0}, v{S1}
            v_permlane16_swap_b32 v{Q0}, v{Q1}
            v_add_f32 v{S0}, v{S0}, v{S1}
            v_add_f32 v{Q0}, v{Q0}, v{Q1}
            v_permlane32_swap_b32 v{S0}, v{Q0}
            v_add_f32 v{S0}, v{S0}, v{Q0}
            v_mov_b32 v{Q0}, v{S0}
            v_permlane32_swap_b32 v{S0}, v{Q0}
            v_mul_f32 v{S0}, {f2u(1/640)}, v{S0}
            v_mul_f32 v{Q0}, {f2u(1/640)}, v{Q0}
            v_fma_f32 v{Q0}, -v{S0}, v{S0}, v{Q0}
            v_max_f32 v{Q0}, 0, v{Q0}''')
            def rbf(r):
                a(f'v_cvt_pk_bf16_f32 v{r}, v{r}, v{r}\nv_and_b32 v{r}, 0xffff0000, v{r}')
            rbf(S0); rbf(Q0)
            a(f'v_add_f32 v{Q0}, {f2u(1e-5)}, v{Q0}'); rbf(Q0)
            a(f'v_sqrt_f32 v{Q0}, v{Q0}'); rbf(Q0)
            a(f'''v_rcp_f32 v{Q0}, v{Q0}
            v_mul_f32 v{S0}, -v{S0}, v{Q0}
            v_cmp_gt_u32 vcc, 32, v0
            v_and_b32 v{S1}, 31, v0
            v_lshrrev_b32 v{Q1}, 5, v0
            v_lshl_add_u32 v{S1}, v{Q1}, 7, v{S1}
            v_cndmask_b32 v{S0}, v{S0}, v{Q0}, vcc
            s_lshl_b32 s8, s{sRG}, 8
            s_add_u32 s8, s8, {L_STAT + 64*t0}
            v_lshl_add_u32 v{S1}, v{S1}, 2, s8
            ds_write_b32 v{S1}, v{S0}''')
        a(f's_mul_i32 s8, s{sWAVE}, 320\ns_add_u32 s8, s8, {L_CSX}')
        if role['orient'] == 1:
            a(f'''v_lshl_add_u32 v{vT0}, v0, 2, s8
            s_mov_b64 exec, 0xffff''')
            for T in range(role['nt']):
                a(f'ds_write_b32 v{vT0}, v{CS+4*T} offset:{64*T}')
        else:
            a(f'''v_lshl_add_u32 v{vT0}, v0, 0, s8
            s_mov_b32 exec_lo, 0x00010001
            s_mov_b32 exec_hi, 0x00010001''')
            for T in range(role['nt']):
                a(f'ds_write_b128 v{vT0}, {vr(CS+4*T, 4)} offset:{64*T}')
        a('s_mov_b64 exec, -1')
        if role.get('zero_kvf'):
            a(f'''s_lshl_b32 s8, s{sWAVE}, 12
            s_add_u32 s8, s8, {L_KVX}
            v_lshl_add_u32 v{vT0}, v0, 4, s8''')
            for i in range(4): a(f'v_mov_b32 v{116+i}, 0')
            for i in range(4): a(f'ds_write_b128 v{vT0}, v[116:119] offset:{1024*i}')
        a('s_waitcnt lgkmcnt(0)\ns_barrier')
        early = role['dma']
        n = 9 if early else 8
        a(f'''s_{"sub" if early else "add"}_u32 s8, s{sWAVE}, {4 if early else 0}
        s_mul_i32 s{sU0}, s8, 17
        {"" if early else f"s_add_u32 s{sU0}, s{sU0}, 9"}
        s_mul_i32 s9, s{sCB}, 5
        s_lshr_b32 s9, s9, 2
        s_lshl_b32 s9, s9, 2
        s_lshl_b32 s10, s{sU0}, 6
        s_add_u32 s9, s9, s10
        s_add_u32 s9, s9, {WS_RPF}
        v_min_u32 v{vT0}, {2*n-1}, v0
        v_and_b32 v{vT1}, 1, v{vT0}
        v_lshrrev_b32 v{vT0}, 1, v{vT0}
        v_lshlrev_b32 v{vT0}, 6, v{vT0}
        v_lshl_add_u32 v{vT0}, v{vT1}, 2, v{vT0}
        v_add_u32 v{vP0}, s9, v{vT0}
        buffer_load_dword v{vP1}, v{vP0}, s[{SRD_WS}:{SRD_WS+3}], 0 offen sc1''')

    def read_partner_cs(self, role, dst):
        a = self.a
        a(f's_xor_b32 s8, s{sWAVE}, 1\ns_mul_i32 s8, s8, 320\ns_add_u32 s8, s8, {L_CSX}')
        if role['orient'] == 1:
            a(f'v_and_b32 v{vT0}, 15, v0\nv_lshl_add_u32 v{vT0}, v{vT0}, 2, s8')
            for T in range(role['nt']): a(f'ds_read_b32 v{dst+T}, v{vT0} offset:{64*T}')
        else:
            a(f'v_and_b32 v{vT0}, 48, v0\nv_add_u32 v{vT0}, s8, v{vT0}')
            for T in range(role['nt']): a(f'ds_read_b128 {vr(dst+4*T, 4)}, v{vT0} offset:{64*T}')

    def read_tok_stats(self, dst):
        a = self.a
        a(f'''s_lshl_b32 s8, s{sRG}, 8
        s_add_u32 s8, s8, {L_STAT}
        v_and_b32 v{vT1}, 15, v0
        v_lshl_add_u32 v{vT1}, v{vT1}, 2, s8''')
        for t in range(4):
            a(f'ds_read2_b32 {vr(dst+2*t, 2)}, v{vT1} offset0:{16*t} offset1:{128+16*t}')

    def a_offset(self, sdst, u_add_code):
        a = self.a
        a(u_add_code)
        a(f'''s_lshl_b32 s10, s{sRB}, 1
        s_add_u32 s10, s10, s{sRG}
        s_lshl_b32 s11, s10, 9
        s_lshl_b32 s12, s9, 2
        s_add_u32 s11, s11, s12
        s_add_u32 s{sdst+1}, s11, {WS_ROWF}
        s_mul_i32 s10, s10, 68
        s_add_u32 s10, s10, s9
        s_lshl_b32 s10, s10, 12
        s_add_u32 s{sdst}, s10, {WS_A}''')

    def h_epilogue(self, role):
        a = self.a
        nt = role['nt']; typ = role['typ']
        PC = 116
        TS = 132
        BF = 140
        TM = 156
        self.read_partner_cs(role, PC)
        self.read_tok_stats(TS)
        if typ == 1:
            code = f'''s_lshr_b32 s8, s{sG}, 1
            s_mul_i32 s9, s8, 17
            s_and_b32 s8, s{sG}, 1
            s_lshl_b32 s8, s8, 1
            s_add_u32 s9, s9, s8
            s_lshr_b32 s8, s{sWP}, 1
            s_add_u32 s9, s9, s8
            s_add_u32 s9, s9, 8'''
        else:
            code = f'''s_lshr_b32 s8, s{sG}, 1
            s_mul_i32 s9, s8, 17
            s_and_b32 s8, s{sG}, 1
            s_lshl_b32 s8, s8, 2
            s_add_u32 s9, s9, s8'''
            if nt == 2:
                code += f'\ns_lshr_b32 s8, s{sWP}, 1\ns_add_u32 s9, s9, s8\ns_add_u32 s9, s9, 2'
        self.a_offset(sXO, code)
        for T in range(nt):
            for h in range(2):
                a(f'v_lshlrev_b32 v{BF+4*T+2*h}, 16, v{vB1+2*T+h}')
                a(f'v_and_b32 v{BF+4*T+2*h+1}, 0xffff0000, v{vB1+2*T+h}')
        a(f'v_lshlrev_b32 v{vW}, 4, v0')
        a('s_waitcnt lgkmcnt(0)')
        for i in range(4 * nt): a(f'v_add_f32 v{CS+i}, v{CS+i}, v{PC+i}')
        for st in range(nt // 2):
            for t in range(4):
                rs, nm = TS + 2*t, TS + 2*t + 1
                OUT = TM + 40 + 4 * (t & 1)
                for half in range(2):
                    T = 2*st + half
                    acc = ACC + 4*(t*nt + T)
                    H = [TM + i for i in range(4)]; E = [TM + 4 + i for i in range(4)]; D = [TM + 8 + i for i in range(4)]
                    for r in range(4): a(f'v_fma_f32 v{H[r]}, v{nm}, v{CS+4*T+r}, v{BF+4*T+r}')
                    for r in range(4): a(f'v_fma_f32 v{H[r]}, v{acc+r}, v{rs}, v{H[r]}')
                    for r in range(4): a(f'v_mul_f32 v{E[r]}, s{sLOG2E}, v{H[r]}')
                    for r in range(4): a(f'v_exp_f32 v{E[r]}, v{E[r]}')
                    for r in range(4): a(f'v_add_f32 v{D[r]}, 2.0, v{E[r]}')
                    for r in range(4): a(f'v_fma_f32 v{D[r]}, v{E[r]}, v{D[r]}, 2.0')
                    for r in range(4): a(f'v_rcp_f32 v{D[r]}, v{D[r]}')
                    for r in range(4): a(f'v_mul_f32 v{D[r]}, v{H[r]}, v{D[r]}')
                    for r in range(4): a(f'v_fma_f32 v{H[r]}, -2.0, v{D[r]}, v{H[r]}')
                    a(f'v_cvt_pk_bf16_f32 v{OUT+2*half}, v{H[0]}, v{H[1]}')
                    a(f'v_cvt_pk_bf16_f32 v{OUT+2*half+1}, v{H[2]}, v{H[3]}')
                a(f'buffer_store_dwordx4 {vr(OUT, 4)}, v{vW}, s[{SRD_WS}:{SRD_WS+3}], s{sXO} offen offset:{1024*t} sc1')
            if st + 1 < nt // 2: a(f's_add_u32 s{sXO}, s{sXO}, 4096')
        a('s_waitcnt vmcnt(0)')
        self.flag_store(sQO, nlanes=nt // 2)

    def kv_epilogue(self, role):
        a = self.a
        RS, NM, PC, TM = 116, 132, 148, 156
        a(f'''s_lshl_b32 s8, s{sRG}, 8
        s_add_u32 s8, s8, {L_STAT}
        v_and_b32 v{vT1}, 48, v0
        v_add_u32 v{vT1}, s8, v{vT1}''')
        for t in range(4):
            a(f'ds_read_b128 {vr(RS+4*t, 4)}, v{vT1} offset:{64*t}')
            a(f'ds_read_b128 {vr(NM+4*t, 4)}, v{vT1} offset:{512+64*t}')
        self.read_partner_cs(role, PC)
        a(f'''s_mov_b32 s10, 0x00ff00ff
        s_mov_b32 s11, 0x00ff00ff
        v_mov_b32 v{vW}, s{sEPS6}
        s_waitcnt lgkmcnt(0)''')
        for T in range(5): a(f'v_add_f32 v{PC+T}, v{PC+T}, v{CS+4*T}')
        KD = 180
        KD = [96, 100, 104, 108, 112, 212, 216, 220]
        def F(p, T): return ACC + 4*((2*p)*5 + T)
        def F2(p): return ACC + 4*((2*p+1)*5 + 2)
        for p in range(2):
            for T in range(5):
                for tt in range(2):
                    t = 2*p + tt
                    acc = ACC + 4*(t*5 + T)
                    V = [TM + 8*tt + i for i in range(4)]; E = [TM + 8*tt + 4 + i for i in range(4)]
                    if T <= 2:
                        if T == 2:
                            W = [TM + 16 + i for i in range(4)]
                            for r in range(4): a(f'v_mul_f32 v{W[r]}, v{NM+4*t+r}, v{PC+T}')
                            for r in range(4): a(f'v_fma_f32 v{W[r]}, v{acc+r}, v{RS+4*t+r}, v{W[r]}')
                            for r in range(4): a(f'v_add_f32 v{V[r]}, s{sEPS6}, v{W[r]}')
                        else:
                            for r in range(4): a(f'v_fma_f32 v{V[r]}, v{NM+4*t+r}, v{PC+T}, v{vW}')
                            for r in range(4): a(f'v_fma_f32 v{V[r]}, v{acc+r}, v{RS+4*t+r}, v{V[r]}')
                        for r in range(4): a(f'v_mul_f32 v{E[r]}, s{sLOG2E}, v{V[r]}')
                        for r in range(4): a(f'v_exp_f32_e64 v{E[r]}, v{E[r]} clamp')
                        for r in range(4): a(f'v_max_f32 v{V[r]}, s{sEPS6}, v{V[r]}')
                        for r in range(4): a(f'v_add_f32 v{V[r]}, v{V[r]}, v{E[r]}')
                        if T == 2:
                            for r in range(4): a(f'v_cndmask_b32 v{V[r]}, v{W[r]}, v{V[r]}, s[10:11]')
                    else:
                        for r in range(4): a(f'v_mul_f32 v{V[r]}, v{NM+4*t+r}, v{PC+T}')
                        for r in range(4): a(f'v_fma_f32 v{V[r]}, v{acc+r}, v{RS+4*t+r}, v{V[r]}')
                for tt in range(2):
                    V = [TM + 8*tt + i for i in range(4)]
                    a(f'v_cvt_pk_bf16_f32 v{F(p,T)+2*tt}, v{V[0]}, v{V[1]}')
                    a(f'v_cvt_pk_bf16_f32 v{F(p,T)+2*tt+1}, v{V[2]}, v{V[3]}')
                if T == 2:
                    for i in range(4): a(f'v_cndmask_b32 v{F2(p)+i}, v{F(p,2)+i}, v{vONE}, s[10:11]')
            for i, (aa, b) in enumerate(self.PRODS):
                B_ = F2(p) if b == 2 else F(p, b)
                d = vr(KD[i], 4)
                a(f'v_mfma_f32_16x16x32_bf16 {d}, {vr(F(p,aa),4)}, {vr(B_,4)}, {d if p else 0}')
        L1 = a.label('Lkx'); L2 = a.label('Lky')
        a(f'''s_lshl_b32 s8, s{sWAVE}, 12
        s_add_u32 s8, s8, {L_KVX}
        v_lshl_add_u32 v{vW}, v0, 4, s8
        s_xor_b32 s9, s{sWAVE}, 1
        s_lshl_b32 s9, s9, 12
        s_add_u32 s9, s9, {L_KVX}
        v_lshl_add_u32 v{vW+1}, v0, 4, s9
        s_lshl_b32 s9, s{sWAVE}, 2
        s_add_u32 s9, s9, {L_CNT}
        v_mov_b32 v{vW+2}, s9
        v_xor_b32 v{vW+3}, 4, v{vW+2}
        s_lshl_b32 s8, s{sG}, 4
        s_add_u32 s8, s8, s{sRB}
        s_lshl_b32 s{sXO}, s8, 12
        s_add_u32 s{sXO}, s{sXO}, {WS_KVP}
        s_lshl_b32 s8, s8, 4
        s_lshl_b32 s9, s{sWAVE}, 2
        s_add_u32 s8, s8, s9
        s_add_u32 s{sQO}, s8, {WS_KVF}
        s_cmp_eq_u32 s{sRG}, 0
        s_cbranch_scc0 {L1}''')
        assert (L_KVX % 8192) == 4096 or True
        for rg in range(2):
            keep = range(4*rg, 4*rg + 4); send = range(4*(1-rg), 4*(1-rg) + 4)
            for n, i in enumerate(send): a(f'ds_write_b128 v{vW}, {vr(KD[i],4)} offset:{1024*n}')
            a(f's_waitcnt lgkmcnt(0)\nds_write_b32 v{vW+2}, v{vONE}')
            Lw = a.label('Lkw'); Ld = a.label('Lkd')
            a(f'''s_mov_b32 s8, 0
            {Lw}:
            ds_read_b32 v{vT1}, v{vW+3}
            s_add_u32 s8, s8, 1
            s_cmp_ge_u32 s8, {self.c.poll_limit}
            s_cbranch_scc1 {Ld}
            s_waitcnt lgkmcnt(0)
            v_cmp_eq_u32 vcc, 0, v{vT1}
            s_cbranch_vccnz {Lw}
            {Ld}:''')
            for n in range(4): a(f'ds_read_b128 {vr(TM+4*n,4)}, v{vW+1} offset:{1024*n}')
            a('s_waitcnt lgkmcnt(0)')
            for n, i in enumerate(keep):
                for r in range(4): a(f'v_add_f32 v{TM+4*n+r}, v{TM+4*n+r}, v{KD[i]+r}')
                a(f'v_cvt_pk_bf16_f32 v{TM+16+2*n}, v{TM+4*n}, v{TM+4*n+1}')
                a(f'v_cvt_pk_bf16_f32 v{TM+16+2*n+1}, v{TM+4*n+2}, v{TM+4*n+3}')
                a(f'buffer_store_dwordx2 {vr(TM+16+2*n,2)}, v{vKVA+n}, s[{SRD_WS}:{SRD_WS+3}], s{sXO} offen sc1')
            if rg == 0: a(f's_branch {L2}\n{L1}:')
        a(f'{L2}:\ns_waitcnt vmcnt(0)')
        self.flag_store(sQO)

    def q_phi(self, role):
        a = self.a
        PC, TS, TM = 116, 136, 144
        self.read_partner_cs(role, PC)
        self.read_tok_stats(TS)
        a(f'v_mov_b32 v{vW}, s{sEPS6}\ns_waitcnt lgkmcnt(0)')
        for i in range(20): a(f'v_add_f32 v{CS+i}, v{CS+i}, v{PC+i}')
        for t in range(4):
            rs, nm = TS + 2*t, TS + 2*t + 1
            for T in range(5):
                acc = ACC + 4*(t*5 + T)
                V = [TM + 8*(T & 1) + i for i in range(4)]; E = [TM + 8*(T & 1) + 4 + i for i in range(4)]
                for r in range(4): a(f'v_fma_f32 v{V[r]}, v{nm}, v{CS+4*T+r}, v{vW}')
                for r in range(4): a(f'v_fma_f32 v{V[r]}, v{acc+r}, v{rs}, v{V[r]}')
                for r in range(4): a(f'v_mul_f32 v{E[r]}, s{sLOG2E}, v{V[r]}')
                for r in range(4): a(f'v_exp_f32_e64 v{E[r]}, v{E[r]} clamp')
                for r in range(4): a(f'v_max_f32 v{V[r]}, s{sEPS6}, v{V[r]}')
                for r in range(4): a(f'v_add_f32 v{V[r]}, v{V[r]}, v{E[r]}')
                d = ACC + 12*t + 2*T
                a(f'v_cvt_pk_bf16_f32 v{d}, v{V[0]}, v{V[1]}')
                a(f'v_cvt_pk_bf16_f32 v{d+1}, v{V[2]}, v{V[3]}')
            a(f'v_mov_b32 v{ACC+12*t+10}, 0\nv_mov_b32 v{ACC+12*t+11}, 0')

    def kv_gather(self):
        a = self.a
        LD = 68
        SUM = 132
        a(f'''s_lshl_b32 s8, s{sG}, 8
        s_add_u32 s8, s8, {WS_KVF}
        v_lshl_add_u32 v{vW}, v0, 2, s8''')
        self.poll(vW, vW+1, 'kv')
        a(f'''s_lshl_b32 s8, s{sWAVE}, 10
        v_lshl_add_u32 v{vW}, v0, 4, s8
        s_lshl_b32 s9, s{sG}, 16
        s_add_u32 s9, s9, {WS_KVP}''')
        for p in range(16):
            a(f'buffer_load_dwordx4 {vr(LD+4*p,4)}, v{vW}, s[{SRD_WS}:{SRD_WS+3}], s9 offen sc1')
            if p < 15: a('s_add_u32 s9, s9, 4096')
        a('s_mov_b32 s10, 0x00003f80\ns_mov_b32 s11, 0x3f800000')
        for i in range(8): a(f'v_mov_b32 v{SUM+i}, 0')
        for p in range(16):
            a(f's_waitcnt vmcnt({15-p})')
            for r in range(4): a(f'v_dot2c_f32_bf16 v{SUM+2*r}, s10, v{LD+4*p+r}')
            for r in range(4): a(f'v_dot2c_f32_bf16 v{SUM+2*r+1}, s11, v{LD+4*p+r}')
        for r in range(4): a(f'v_cvt_pk_bf16_f32 v{LD+r}, v{SUM+2*r}, v{SUM+2*r+1}')
        a(f'''ds_write_b64 v205, {vr(LD,2)}
        ds_write_b64 v206, {vr(LD+2,2)}
        v_mov_b32 v{vW}, {L_CNT + 32}
        v_mov_b32 v{vW+1}, 1
        s_waitcnt lgkmcnt(0)
        s_mov_b64 exec, 1
        ds_add_u32 v{vW}, v{vW+1}
        s_mov_b64 exec, -1''')

    def q_out(self):
        a = self.a
        KF = 64
        D = [120, 156]
        OUT = 184
        self.lds_wait(L_CNT + 32, 4, 'kvf')
        fidx = [0, 2, 3, 4, 5, 6, 7, 8, 9, 10, 11, 12, 13, 14]
        reg = {f: KF + 4*n for n, f in enumerate(fidx)}
        a(f'v_lshlrev_b32 v{vW}, 4, v0\nv_add_u32 v{vW+1}, {L_KVX}, v{vW}')
        for f in fidx: a(f'ds_read_b128 {vr(reg[f],4)}, v{vW+1} offset:{1024*f}')
        code = f'''s_lshr_b32 s8, s{sG}, 1
        s_mul_i32 s9, s8, 17
        s_and_b32 s13, s{sG}, 1
        s_lshl_b32 s8, s13, 1
        s_add_u32 s9, s9, s8
        s_add_u32 s9, s9, 12'''
        self.a_offset(sXO, code)
        a(f'''s_mul_i32 s8, s13, {(-8192 + 512) & 0xffffffff}
        s_add_u32 s{sHO}, s{sXO}, s8
        s_add_u32 s{sHO}, s{sHO}, 16384
        s_add_u32 s{sT0}, s{sXO}, 4096
        v_lshlrev_b32 v{vW+2}, 3, v0
        s_waitcnt lgkmcnt(0)''')
        num = {0: [(0, 0)], 1: [(2, 0), (3, 1)], 2: [(4, 0), (5, 1)], 3: [(6, 1), (7, 2)], 4: [(8, 1), (9, 2)],
               5: [(10, 0), (11, 1), (12, 2)], 6: [(13, 1), (14, 2)]}
        def mf(t):
            L = []; d0 = D[t & 1]
            for J in (5, 6, 0, 1, 2, 3, 4):
                for n, (f, ks) in enumerate(num[J]):
                    d = vr(d0 + 4*J, 4)
                    L.append(f'v_mfma_f32_16x16x32_bf16 {d}, {vr(reg[f],4)}, {vr(ACC+12*t+4*ks,4)}, {d if n else 0}')
            return L
        def post(t):
            L = []; d0 = D[t & 1]
            den = [d0+20, d0+21, d0+22, d0+23, d0+24]
            for j in range(5): L.append(f'v_add_f32 v{den[j]}, s{sEPS6}, v{den[j]}')
            for j in range(5): L.append(f'v_rcp_f32 v{den[j]}, v{den[j]}')
            o = OUT + 0
            for j in range(5):
                for r in range(4): L.append(f'v_mul_f32 v{d0+4*j+r}, v{d0+4*j+r}, v{den[j]}')
                L.append(f'v_cvt_pk_bf16_f32 v{o+2*j}, v{d0+4*j}, v{d0+4*j+1}')
                L.append(f'v_cvt_pk_bf16_f32 v{o+2*j+1}, v{d0+4*j+2}, v{d0+4*j+3}')
                if j == 1: L.append(f'buffer_store_dwordx4 {vr(o,4)}, v{vW}, s[{SRD_WS}:{SRD_WS+3}], s{sXO} offen offset:{1024*t} sc1')
                if j == 3: L.append(f'buffer_store_dwordx4 {vr(o+4,4)}, v{vW}, s[{SRD_WS}:{SRD_WS+3}], s{sT0} offen offset:{1024*t} sc1')
                if j == 4: L.append(f'buffer_store_dwordx2 {vr(o+8,2)}, v{vW+2}, s[{SRD_WS}:{SRD_WS+3}], s{sHO} offen offset:{1024*t} sc1')
            return L
        for l in mf(0): a(l)
        for t in range(4):
            if t < 3:
                for l in interleave(mf(t+1), post(t), per=3): a(l)
            else:
                for l in post(t): a(l)
        a('s_waitcnt vmcnt(0)')
        self.flag_store(sQO)

    AB = [96, 112, 128]
    BB = [156, 176, 196, 216, 236]

    def p2_mfma(self, ab, bb, first):
        L = []
        for t in range(4):
            for j in range(5):
                d = vr(ACC + 4*(5*t + j), 4)
                L.append(f'v_mfma_f32_16x16x32_bf16 {d}, {vr(bb+4*j,4)}, {vr(ab+4*t,4)}, {0 if first else d}')
        return L

    def p2_common_setup(self, early):
        a = self.a
        self.poll(vP0, vP1, 'rp', pre_issued=True)
        a(f'''s_mul_i32 s8, s{sCB}, 68
        s_add_u32 s8, s8, s{sU0}
        s_mul_i32 s8, s8, 5120
        s_add_u32 s{sHO}, s8, {WS_B2}
        s_mul_i32 s8, s{sRB2}, 68
        s_add_u32 s8, s8, s{sU0}
        s_lshl_b32 s8, s8, 12
        s_add_u32 s{sAO}, s8, {WS_A}
        s_and_b32 s8, s{sWAVE}, 3
        s_mul_i32 s{sDM}, s8, {PAIR}
        {"" if early else f"s_add_u32 s{sDM}, s{sDM}, 20480"}
        v_lshlrev_b32 v{vW}, 4, v0
        v_add_u32 v{vW+1}, s{sDM}, v{vW}''')
        for k in range(5):
            for j in range(5):
                if j == 4:
                    a(f's_add_u32 s{sT0}, s{sHO}, 4096\nbuffer_load_dwordx4 {vr(self.BB[k]+16,4)}, v{vW}, s[{SRD_WS}:{SRD_WS+3}], s{sT0} offen sc1')
                else:
                    a(f'buffer_load_dwordx4 {vr(self.BB[k]+4*j,4)}, v{vW}, s[{SRD_WS}:{SRD_WS+3}], s{sHO} offen offset:{1024*j} sc1')
            a(f's_add_u32 s{sHO}, s{sHO}, 5120')
        for q in range(5 if early else 4):
            n = 4 if (early or q < 3) else 3
            a(f's_add_u32 m0, s{sDM}, {4096*q}\ns_nop 0')
            for j in range(n):
                a(f'buffer_load_dwordx4 v{vW}, s[{SRD_WS}:{SRD_WS+3}], s{sHO} offen offset:{1024*j} sc1 lds')
            a(f's_add_u32 s{sHO}, s{sHO}, 4096')
        self.srd(SRD_X, 16, 2048*1280)
        self.srd(SRD_O, 30, 2048*1280)
        a(f'''s_mul_i32 s8, s{sRB2}, {64*1280}
        s_mul_i32 s9, s{sCB}, 160
        s_add_u32 s{sXO}, s8, s9
        s_lshl_b32 s8, s{sWAVE}, 6''')
        for n in range(1 if early else 2):
            a(f'''v_add_u32 v{vT0}, s8, v0
            v_mul_u32_u24 v{vT1}, 6554, v{vT0}
            v_lshrrev_b32 v{vT1}, 16, v{vT1}
            v_mul_u32_u24 v{vW+2}, 10, v{vT1}
            v_sub_u32 v{vT0}, v{vT0}, v{vW+2}
            v_mul_u32_u24 v{vW+2}, 1280, v{vT1}
            v_lshl_add_u32 v{152+2*n}, v{vT0}, 4, v{vW+2}
            v_mul_u32_u24 v{vW+2}, 336, v{vT1}
            v_lshl_add_u32 v{153+2*n}, v{vT0}, 4, v{vW+2}''')
            if n == 1:
                a(f's_cmp_lt_u32 s{sWAVE}, 2\ns_cselect_b32 s9, 0, {OOB}\nv_add_u32 v{152+2*n}, s9, v{152+2*n}')
            a(f'buffer_load_dwordx4 {vr(144+4*n,4)}, v{152+2*n}, s[{SRD_X}:{SRD_X+3}], s{sXO} offen')
            a(f's_add_u32 s8, s8, 512')
        a(f'''s_lshl_b32 s8, s{sRB2}, 9
        s_lshl_b32 s9, s{sU0}, 2
        s_add_u32 s8, s8, s9
        s_add_u32 s{sQO}, s8, {WS_ROWF}
        v_min_u32 v{vT0}, {8 if early else 2}, v0
        v_lshl_add_u32 v{vP0}, v{vT0}, 2, s{sQO}''')
        self.poll(vP0, vP1, 'act')

    def a_loads(self, k, dst, comp=False):
        L = []
        if comp:
            for t in range(4):
                for h in range(2):
                    L.append(f'buffer_load_dwordx2 {vr(dst+4*t+2*h,2)}, v{vW+2}, s[{SRD_WS}:{SRD_WS+3}], s{sAO} offen offset:{1024*t+512*h} sc1')
        else:
            for t in range(4):
                L.append(f'buffer_load_dwordx4 {vr(dst+4*t,4)}, v{vW}, s[{SRD_WS}:{SRD_WS+3}], s{sAO} offen offset:{1024*t} sc1')
        L[-1] += f'\ns_add_u32 s{sAO}, s{sAO}, 4096'
        return L

    def b_reads(self, slot, dst):
        return [f'ds_read_b128 {vr(dst+4*j,4)}, v{vW+1} offset:{5120*slot + 1024*j}' for j in range(5)]

    def p2_early(self):
        a = self.a
        self.p2_common_setup(True)
        AB, BB = self.AB, self.BB
        Adst = [AB[0], AB[1], AB[2], AB[0], BB[0], AB[1], AB[2], BB[2], AB[0]]
        Bsrc = [BB[0], BB[1], BB[2], BB[3], BB[4], BB[1], BB[3], BB[4], BB[0]]
        after_A = {0: [3, 4], 1: [5], 2: [6, 7], 3: [8]}
        after_B = {1: [5], 3: [6], 4: [7, 8]}
        issued = []
        for k in range(3):
            for l in self.a_loads(k, Adst[k]): a(l)
            issued.append(k)
        pend_lds = []
        for k in range(9):
            later = len([x for x in issued if x > k])
            w = f's_waitcnt vmcnt({4*later})'
            if k >= 5: w += f' lgkmcnt({5 * len([x for x in pend_lds if x > k])})'
            a(w)
            m = self.p2_mfma(Adst[k], Bsrc[k], k == 0)
            fill = []
            for x in after_A.get(k - 1, []): fill += self.a_loads(x, Adst[x]); issued.append(x)
            for x in after_B.get(k - 1, []): fill += self.b_reads(x - 5, Bsrc[x]); pend_lds.append(x)
            for l in interleave(m, fill, per=1, start=1): a(l)
        for n in range(20): a(f'ds_write_b128 v{vW+1}, {vr(ACC+4*n,4)} offset:{1024*n}')
        Lx = a.label('Lnoep')
        a(f'''s_lshl_b32 s8, s2, 3
        s_add_u32 s8, s8, s{sWAVE}
        s_cmp_eq_u32 s8, 4
        s_cbranch_scc0 {Lx}''')
        for q in range(4):
            a(f'v_lshlrev_b32 v{vP0}, 2, v0\nv_add_u32 v{vP0}, {WS_ALIVE + 256*q}, v{vP0}')
            self.poll(vP0, vP1, f'alive{q}')
        a(f's_mov_b32 s8, {WS_EPOCH}')
        self.flag_store(8)
        a(f'{Lx}:\ns_waitcnt lgkmcnt(0)\ns_barrier\ns_branch L_final')

    def p2_late(self):
        a = self.a
        a('L_p2late:')
        self.p2_common_setup(False)
        AB, BB = self.AB, self.BB
        for k in range(3):
            for l in self.a_loads(k, AB[k]): a(l)
        for k in range(3):
            a(f's_waitcnt vmcnt({4*(2-k)})')
            for l in self.p2_mfma(AB[k], BB[k], k == 0): a(l)
        a(f'''v_min_u32 v{vT0}, 1, v0
        v_lshlrev_b32 v{vT0}, 3, v{vT0}
        v_add_u32 v{vT0}, 12, v{vT0}
        v_add_u32 v{vP0}, s{sQO}, v{vT0}
        v_lshlrev_b32 v{vW+2}, 3, v0''')
        self.poll(vP0, vP1, 'o')
        Adst = {3: AB[0], 4: AB[1], 5: AB[2], 6: BB[0], 7: BB[1]}
        Bsrc = {3: BB[3], 4: BB[4], 5: BB[2], 6: BB[3], 7: BB[4]}
        for k in range(3, 8):
            for l in self.a_loads(k, Adst[k], comp=(k == 7)): a(l)
        a(f's_barrier\nv_subrev_u32 v{vT0}, 20480, v{vW+1}')
        for q in range(4):
            for n in range(5): a(f'ds_read_b128 {vr(BB[2]+4*n,4)}, v{vT0} offset:{1024*(5*q+n)}')
            for n in range(5):
                a(f's_waitcnt lgkmcnt({4-n})')
                for r in range(4): a(f'v_add_f32 v{ACC+20*q+4*n+r}, v{ACC+20*q+4*n+r}, v{BB[2]+4*n+r}')
        for l in self.b_reads(0, BB[2]): a(l)
        cnt = {3: 20, 4: 16, 5: 12, 6: 8, 7: 0}
        for k in range(3, 8):
            w = f's_waitcnt vmcnt({cnt[k]})'
            if k >= 5: w += ' lgkmcnt(0)' if k != 6 else ' lgkmcnt(5)'
            a(w)
            m = self.p2_mfma(Adst[k], Bsrc[k], False)
            fill = []
            if k == 4: fill = self.b_reads(1, BB[3])
            if k == 5: fill = self.b_reads(2, BB[4])
            for l in interleave(m, fill, per=1, start=1): a(l)
        a(f'''v_and_b32 v{vT0}, 15, v0
        v_mul_u32_u24 v{vT0}, 336, v{vT0}
        v_bfe_u32 v{vT1}, v0, 4, 1
        v_mul_u32_u24 v{vT1}, 160, v{vT1}
        v_add_u32 v{vT0}, v{vT0}, v{vT1}
        v_lshrrev_b32 v{vT1}, 5, v0
        v_lshl_add_u32 v{vT0}, v{vT1}, 4, v{vT0}
        s_sub_u32 s8, s{sDM}, 20480
        v_add_u32 v{vT0}, s8, v{vT0}''')
        for t in range(4):
            for j in range(5):
                a(f'ds_write_b128 v{vT0}, {vr(ACC+4*(5*t+j),4)} offset:{5376*t + 32*j}')
        a('s_waitcnt lgkmcnt(0)')

    def final(self):
        a = self.a
        a('L_final:\ns_barrier')
        def task(n):
            R = 16
            a(f'v_add_u32 v{vT0}, {2*PAIR}, v{153+2*n}')
            for p in range(4):
                vb = 153 + 2*n if p < 2 else vT0
                for h in range(2):
                    a(f'ds_read_b128 {vr(R+8*p+4*h,4)}, v{vb} offset:{(p & 1)*PAIR + 160*h}')
            a('s_waitcnt lgkmcnt(4)')
            for i in range(8): a(f'v_add_f32 v{R+i}, v{R+i}, v{R+8+i}')
            a('s_waitcnt lgkmcnt(0)')
            for i in range(8): a(f'v_add_f32 v{R+16+i}, v{R+16+i}, v{R+24+i}')
            for i in range(4):
                a(f'v_lshlrev_b32 v{R+8+2*i}, 16, v{144+4*n+i}')
                a(f'v_and_b32 v{R+8+2*i+1}, 0xffff0000, v{144+4*n+i}')
            for i in range(8): a(f'v_add_f32 v{R+i}, v{R+i}, v{R+16+i}')
            for i in range(8): a(f'v_add_f32 v{R+i}, v{R+i}, v{R+8+i}')
            for i in range(4): a(f'v_cvt_pk_bf16_f32 v{R+32+4*n+i}, v{R+2*i}, v{R+2*i+1}')
            a(f'buffer_store_dwordx4 {vr(R+32+4*n,4)}, v{152+2*n}, s[{SRD_O}:{SRD_O+3}], s{sXO} offen')
        task(0)
        a(f's_cmp_lt_u32 s{sWAVE}, 2\ns_cbranch_scc0 L_end')
        task(1)
        a('L_end:\ns_endpgm\nL_code_end:')

    def build(self):
        a = self.a
        ones = 184
        self.entry()
        roles = {}
        def ones_init():
            for i in range(4): a(f'v_mov_b32 v{244+i}, 0x3f803f80')
        r = dict(name='h2a', typ=1, nt=2, orient=2, tiles=[(vW, 0), (vW+1, 0)], rs8=1024, stat=[], dma=True, ones=244)
        self.light_prologue(1); ones_init()
        self.main_loop(r); self.exchange(r); self.h_epilogue(r)
        a('s_branch L_p2early')
        a('L_h2b:')
        r = dict(name='h2b', typ=2, nt=2, orient=2, tiles=[(vW, 0), (vW+1, 0)], rs8=2048, stat=[], dma=True, ones=244)
        self.light_prologue(2); ones_init()
        self.main_loop(r); self.exchange(r); self.h_epilogue(r)
        a('L_p2early:')
        self.p2_early()
        self.heavy_common()
        ones_init_done = False
        self.kv_prologue(); ones_init()
        a(f's_cmp_eq_u32 s{sWP}, 0\ns_cbranch_scc0 L_kvb')
        tiles = [(vW, 0), (vW, 32), (vW+1, 0), (vW, 192), (vW, 224)]
        r = dict(name='kva', typ=1, nt=5, orient=1, tiles=tiles, rs8=2816, stat=[0, 1], dma=False, ones=244, repack=True)
        self.main_loop(r); self.exchange(r)
        a('s_branch L_kvepi\nL_kvb:')
        r2 = dict(r, name='kvb', stat=[2, 3])
        self.main_loop(r2); self.exchange(r2)
        a('L_kvepi:')
        self.kv_epilogue(r)
        a('s_branch L_p2late')
        self.t2heavy_prologue(); ones_init()
        r = dict(name='q5', typ=2, nt=5, orient=2, tiles=[(vW, 32*T) for T in range(5)], rs8=1280, stat=[0, 1], dma=False, ones=244, repack=True, zero_kvf=True)
        self.main_loop(r); self.exchange(r); self.q_phi(r)
        a('s_branch L_kvg')
        self.h4_prologue(); ones_init()
        r = dict(name='h4', typ=2, nt=4, orient=2, tiles=[(vW+T, 0) for T in range(4)], rs8=2048, stat=[2, 3], dma=False, ones=244, repack=True, zero_kvf=True)
        self.main_loop(r); self.exchange(r); self.h_epilogue(r)
        a('L_kvg:')
        self.kv_gather()
        a(f's_cmp_eq_u32 s{sWP}, 0\ns_cbranch_scc0 L_p2late')
        self.q_out()
        self.p2_late()
        self.final()
        body = a.text()
        return f'''; Fused LayerNorm + linear attention + mish MLP, one persistent launch (generated by dev/gen.py)
; @launch grid=(256,1,1) block=(512,1,1) lds={LDS_SIZE}
.amdgcn_target "amdgcn-amd-amdhsa--gfx950"
.text
.globl {NAME}
.p2align 8
.type {NAME},@function
{NAME}:
{body}
.section .rodata,"a"
.p2align 6
.amdhsa_kernel {NAME}
  .amdhsa_next_free_vgpr 256
  .amdhsa_next_free_sgpr 102
  .amdhsa_accum_offset 256
  .amdhsa_group_segment_fixed_size 0
  .amdhsa_kernarg_size 80
  .amdhsa_user_sgpr_count 2
  .amdhsa_user_sgpr_kernarg_segment_ptr 1
  .amdhsa_system_sgpr_workgroup_id_x 1
  .amdhsa_float_denorm_mode_32 3
.end_amdhsa_kernel
'''

def generate(path, **kw):
    c = Cfg()
    for k, v in kw.items(): setattr(c, k, v)
    g = Gen(c)
    s = g.build()
    open(path, 'w').write(s)
    return g

if __name__ == '__main__':
    out = sys.argv[1] if len(sys.argv) > 1 else 'k.s'
    g = generate(out)
    print('nops inserted', g.a.nops, 'lines', len(g.a.lines))
```

```python
import sys
from asmx import A, interleave, vr, sr

NAME = 'parallel_sum__linear_attn_block__dense_activation_mish__prompt_kernel'

class Cfg:
    stamps = False
    stagger = (1, 3)
    rp_issue, rp_store, rp_flag = 1, 3, 5
    poll_limit = 100000
    p2map = 0
    loopstamps = False
    x_nodma = x_nomfma = x_nodots = x_noreads = x_nocs = False
    p2sc = ' sc1'

WS_EPOCH = 0
WS_KVF   = 0x1000
WS_ROWF  = 0x2000
WS_RPF   = 0x6000
WS_ALIVE = 0x8000
WS_KVP   = 0x10000
WS_A     = 0x100000
WS_B2    = 0xA00000
WS_STAMP = 0x1000000
WS_SIZE  = 0x10000000
OOB      = 0x7FFF0000

SZ1 = 16384 + 22528 + 8192
SZ2 = 16384 + 10240 + 16384
L_W = 16384
L_H1 = 38912
L_H2 = 26624
L_RPK = 141312
L_KVX = 143360
L_STAT = 159744
L_CSX = 160768
L_CNT = 163328
L_DUMMY = 163392
LDS_SIZE = 163840
PAIR = 35840

sWAVE, sTYPE, sG, sRB, sRG = 3, 4, 5, 6, 7
SRD_X, SRD_Q, SRD_H, SRD_WS, SRD_R, SRD_O, SRD_B1, SRD_C = 36, 40, 44, 48, 52, 56, 60, 64
sIT, sST, sXO, sQO, sHO, sDM, sDELTA, sSLOT, sT0, sTAG, sRB2, sCB, sWP = 68, 69, 70, 71, 72, 73, 74, 75, 76, 77, 78, 79, 80
sLOG2E, sEPS6, sRPV, sRPS0, sRPS1, sRPF = 81, 82, 83, 84, 85, 86
sRPD = 87
sU0, sAO, sPC = 91, 92, 93
sSTAMP = 94
sSTB = 96
vXA0, vXA1, vW = 1, 2, 3
vST = 7
vONE = 11
vP0, vP1, vT0, vT1 = 12, 13, 14, 15
ACC, CS = 16, 96
XF = [116, 132]
WF = [148, 168]
vDX, vDW, vDH = 188, 189, 192
vB1 = 194
vKVA = 201
vRPG, vRPL = 209, 210
vRPT = 212
vEP = 211
vSTAMP = 228

def f2u(x):
    import struct
    return struct.unpack('<I', struct.pack('<f', x))[0]

class Gen:
    def __init__(self, cfg):
        self.c = cfg
        self.a = A()
        self.vs = 207

    def stamp(self, idx, dyn=False):
        if not self.c.stamps: return
        if dyn and not self.c.loopstamps: return
        a = self.a
        a(f's_memrealtime s[{sSTAMP}:{sSTAMP+1}]\ns_waitcnt lgkmcnt(0)')
        if dyn:
            a(f'''s_add_u32 s{sSTAMP+1}, s{sIT}, {idx}
            v_cmp_eq_u32 vcc, s{sSTAMP+1}, v0
            v_mov_b32 v208, s{sSTAMP}
            v_cndmask_b32 v{self.vs}, v{self.vs}, v208, vcc''')
        else:
            a(f'v_writelane_b32 v{self.vs}, s{sSTAMP}, {idx}')
            ck = {0: 26, 3: 27, 4: 28, 14: 29, 25: 30}.get(idx)
            if ck:
                a(f's_memtime s[{sSTAMP}:{sSTAMP+1}]\ns_waitcnt lgkmcnt(0)\nv_writelane_b32 v{self.vs}, s{sSTAMP}, {ck}')

    def stamp_move(self):
        if self.c.stamps: self.a('v_mov_b32 v6, v207')
        self.vs = 6

    def stamp_store(self):
        if not self.c.stamps: return
        self.a(f'''s_lshl_b32 s8, s2, 3
        s_add_u32 s8, s8, s{sWAVE}
        s_lshl_b32 s8, s8, 8
        s_add_u32 s8, s8, {WS_STAMP}
        v_lshlrev_b32 v7, 2, v0
        buffer_store_dword v6, v7, s[{SRD_WS}:{SRD_WS+3}], s8 offen''')

    def poll(self, vaddr, vtmp, name, pre_issued=False):
        a = self.a
        L = a.label('Lpoll_' + name); Lc = a.label('Lchk_' + name); Ld = a.label('Ldone_' + name)
        a(f's_mov_b32 s8, 0')
        if pre_issued:
            a(f's_branch {Lc}')
        a(f'''{L}:
        buffer_load_dword v{vtmp}, v{vaddr}, s[{SRD_WS}:{SRD_WS+3}], 0 offen sc1
        s_waitcnt vmcnt(0)
        {Lc}:
        s_add_u32 s8, s8, 1
        s_cmp_ge_u32 s8, {self.c.poll_limit}
        s_cbranch_scc1 {Ld}
        v_cmp_ne_u32 vcc, s{sTAG}, v{vtmp}
        s_cbranch_vccnz {L}
        {Ld}:''')

    def lds_wait(self, off, val, name):
        a = self.a
        L = a.label('Llw_' + name); Ld = a.label('Llwd_' + name)
        a(f'''s_mov_b32 s8, 0
        v_mov_b32 v{vT0}, {off}
        {L}:
        ds_read_b32 v{vT1}, v{vT0}
        s_add_u32 s8, s8, 1
        s_cmp_ge_u32 s8, {self.c.poll_limit}
        s_cbranch_scc1 {Ld}
        s_waitcnt lgkmcnt(0)
        v_cmp_gt_u32 vcc, {val}, v{vT1}
        s_cbranch_vccnz {L}
        {Ld}:
        s_waitcnt lgkmcnt(0)''')

    def flag_store(self, soff_expr_reg, nlanes=1, imm=0):
        a = self.a
        a(f'''v_lshlrev_b32 v{vT0}, 2, v0
        v_mov_b32 v{vT1}, s{sTAG}
        s_mov_b64 exec, {(1 << nlanes) - 1}
        buffer_store_dword v{vT1}, v{vT0}, s[{SRD_WS}:{SRD_WS+3}], s{soff_expr_reg} offen offset:{imm} sc1
        s_mov_b64 exec, -1''')

    def srd(self, r, ptr, size):
        self.a(f's_mov_b32 s{r}, s{ptr}\ns_mov_b32 s{r+1}, s{ptr+1}\ns_mov_b32 s{r+2}, {size}\ns_mov_b32 s{r+3}, 0x20000')

    def kmap(self, vd, vrow, vt):
        self.a(f'''v_and_b32 v{vt}, 4, v{vrow}
        v_lshlrev_b32 v{vt}, 1, v{vt}
        v_and_or_b32 v{vd}, v{vrow}, 51, v{vt}
        v_bfe_u32 v{vt}, v{vrow}, 3, 1
        v_lshl_or_b32 v{vd}, v{vt}, 2, v{vd}''')

    def entry(self):
        a = self.a; c = self.c
        a(f'''s_cmp_ge_u32 s2, 256
        s_cbranch_scc1 L_end
        s_load_dwordx16 s[16:31], s[0:1], 0
        s_load_dwordx4 s[32:35], s[0:1], 64
        s_getpc_b64 s[{SRD_C}:{SRD_C+1}]
        L_pc:
        v_lshrrev_b32 v1, 6, v0
        s_lshr_b32 s9, s2, 3
        v_and_b32 v0, 63, v0
        v_readfirstlane_b32 s{sWAVE}, v1
        s_and_b32 s8, s9, 3
        s_mov_b32 s{SRD_C+2}, L_code_end-L_pc
        s_mov_b32 s{SRD_C+3}, 0x20000
        s_lshl_b32 s8, s8, 13
        s_lshl_b32 s10, s{sWAVE}, 15
        s_add_u32 s8, s8, s10
        v_lshl_add_u32 v2, v0, 7, s8
        s_cmp_ge_u32 s10, L_code_end-L_pc
        s_cbranch_scc1 L_nopf
        buffer_load_dword v255, v2, s[{SRD_C}:{SRD_C+3}], 0 offen
        L_nopf:''')
        if c.stamps: a('v_mov_b32 v207, 0')
        self.stamp(0)
        a(f'''s_and_b32 s8, s2, 7
        s_and_b32 s10, s8, 1
        s_lshl_b32 s10, s10, 3
        s_and_b32 s11, s9, 7
        s_add_u32 s{sRB}, s10, s11
        s_lshr_b32 s12, s9, 3
        s_and_b32 s{sTYPE}, s12, 1
        s_lshr_b32 s13, s12, 1
        s_and_b32 s14, s8, 6
        s_add_u32 s{sG}, s14, s13
        s_and_b32 s{sRG}, s{sWAVE}, 1''')
        sa, sb = c.stagger
        a(f'''s_mul_i32 s11, s11, {sa}
        s_mul_i32 s12, s12, {sb}
        s_add_u32 s11, s11, s12
        s_mul_i32 s12, s11, 6554
        s_lshr_b32 s12, s12, 16
        s_mul_i32 s12, s12, 10
        s_sub_u32 s{sST}, s11, s12''')
        if c.p2map == 0:
            a(f'''s_lshl_b32 s10, s10, 1
            s_lshl_b32 s14, s14, 1
            s_add_u32 s10, s10, s14
            s_and_b32 s11, s9, 3
            s_add_u32 s{sRB2}, s10, s11
            s_lshr_b32 s{sCB}, s9, 2''')
        else:
            a(f'''s_lshl_b32 s10, s10, 1
            s_and_b32 s14, s8, 2
            s_lshl_b32 s14, s14, 2
            s_add_u32 s10, s10, s14
            s_and_b32 s11, s9, 7
            s_add_u32 s{sRB2}, s10, s11
            s_lshr_b32 s11, s9, 3
            s_and_b32 s14, s8, 4
            s_add_u32 s{sCB}, s11, s14''')
        a(f'''s_mov_b32 s{sLOG2E}, {f2u(1.4426950408889634)}
        s_mov_b32 s{sEPS6}, {f2u(1e-6)}
        s_mov_b32 s{sIT}, 0
        s_mov_b32 s{sSLOT}, 0
        v_mov_b32 v{vONE}, 0x3f803f80''')
        a(f'''v_and_b32 v15, 15, v0
        v_lshrrev_b32 v14, 4, v0
        v_lshrrev_b32 v3, 1, v15
        v_xor_b32 v3, v3, v14
        v_lshlrev_b32 v3, 4, v3
        v_lshl_add_u32 v3, v15, 7, v3
        s_lshl_b32 s8, s{sRG}, 13
        v_add_u32 v{vXA0}, s8, v3
        v_xor_b32 v{vXA1}, 64, v{vXA0}''')
        a(f'''v_lshrrev_b32 v12, 5, v0
        v_lshlrev_b32 v12, 4, v12
        v_and_b32 v3, 1, v14
        v_lshl_add_u32 v12, v3, 2, v12
        v_bfe_u32 v3, v0, 2, 2
        v_add_u32 v12, v12, v3
        v_and_b32 v13, 3, v0
        v_lshlrev_b32 v13, 3, v13''')
        a(f'''s_cmp_ge_u32 s{sWAVE}, 4
        s_cbranch_scc0 L_heavy
        s_sub_u32 s{sWP}, s{sWAVE}, 4
        s_cmp_eq_u32 s{sTYPE}, 0
        s_cbranch_scc0 L_h2b''')

    def srds_common(self):
        a = self.a
        a('s_waitcnt lgkmcnt(0)')
        self.stamp(1)
        self.srd(SRD_WS, 34, WS_SIZE)

    def load_epoch(self):
        a = self.a
        a(f'buffer_load_dword v{vEP}, off, s[{SRD_WS}:{SRD_WS+3}], 0 sc1')

    def make_tag(self):
        a = self.a
        a(f'''v_readfirstlane_b32 s8, v{vEP}
        s_mul_i32 s8, s8, 0x9E3779B1
        s_add_u32 s{sTAG}, s8, 0x7F4A7C15''')

    def dma_list(self, typ):
        L = []
        def one(ldsoff, srd, sbase, soff, v):
            s = f's_add_u32 m0, s{sDM}, {ldsoff}\n'
            if soff:
                s += f's_add_u32 s{sT0}, s{sbase}, {soff}\n'; so = sT0
            else:
                s += 's_nop 0\n'; so = sbase
            s += f'buffer_load_dwordx4 v{v}, s[{srd}:{srd+3}], s{so} offen lds'
            return s
        for q in range(4):
            L.append(one(q * 4096, SRD_X, sXO, q * 40960, vDX))
        if typ == 1:
            for q in range(2):
                L.append(one(L_H1 + q * 4096, SRD_H, sHO, q * 32 * 3072, vDH))
            for q in range(2):
                L.append(one(L_W + q * 4096, SRD_Q, sQO, 0, vDW + q))
                L.append(one(L_W + q * 4096 + 11 * 1024, SRD_Q, sQO, 32 * 3840, vDW + q))
            C = [one(L_W + 8192, SRD_Q, sQO, 0, vDW + 2), one(L_W + 8192 + 11 * 1024, SRD_Q, sQO, 32 * 3840, vDW + 2)]
            lim = 3
        else:
            for q in range(4):
                L.append(one(L_H2 + q * 4096, SRD_H, sHO, q * 16 * 3072, vDH))
            for q in range(2):
                L.append(one(L_W + q * 4096, SRD_Q, sQO, 0, vDW + q))
            C = [one(L_W + 8192, SRD_Q, sQO, 0, vDW + 2)]
            lim = 2
        return L, C, lim

    def dma_offsets(self):
        return f'''s_lshl_b32 s8, s{sST}, 7
        s_add_u32 s{sXO}, s87, s8
        s_mul_i32 s8, s{sST}, {64*3840}
        s_add_u32 s{sQO}, s88, s8
        s_mul_i32 s8, s{sST}, {64*3072}
        s_add_u32 s{sHO}, s89, s8
        s_add_u32 s{sST}, s{sST}, 1
        s_cmp_eq_u32 s{sST}, 10
        s_cselect_b32 s{sST}, 0, s{sST}'''

    def light_prologue(self, typ):
        a = self.a
        SZ = SZ1 if typ == 1 else SZ2
        a(f'''s_and_b32 s8, s{sWP}, 1
        s_lshl_b32 s9, s8, 2
        v_add_u32 v3, s9, v14
        v_and_b32 v4, 7, v0
        v_xor_b32 v3, v3, v4
        v_lshrrev_b32 v5, 3, v0
        v_mul_u32_u24 v6, 1280, v5
        v_lshl_add_u32 v{vDX}, v3, 4, v6''')
        if typ == 1:
            a(f'''v_and_b32 v3, 3, v5
            v_lshrrev_b32 v6, 2, v5
            v_lshl_add_u32 v3, v6, 3, v3
            v_mul_u32_u24 v3, 3072, v3
            v_lshrrev_b32 v6, 1, v4
            v_xor_b32 v6, v6, v14
            v_lshl_add_u32 v3, v6, 5, v3
            v_and_b32 v6, 1, v0
            v_lshl_add_u32 v{vDH}, v6, 4, v3''')
            for q in range(3):
                a(f'''s_lshl_b32 s9, s{sWP}, 6
                s_add_u32 s9, s9, {q*256}
                v_add_u32 v3, s9, v0
                v_mul_u32_u24 v4, 2979, v3
                v_lshrrev_b32 v4, 16, v4
                v_mul_u32_u24 v5, 22, v4
                v_sub_u32 v3, v3, v5''')
                self.kmap(5, 4, 6)
                a(f'''v_mul_u32_u24 v5, 3840, v5
                v_lshl_add_u32 v5, v3, 4, v5
                v_cmp_lt_u32 vcc, 10, v3
                v_add_u32 v6, {1280 - 176}, v5
                v_cndmask_b32 v5, v5, v6, vcc
                v_cmp_eq_u32 vcc, 10, v3
                v_cmp_eq_u32 s[10:11], 21, v3
                s_or_b64 vcc, vcc, s[10:11]
                v_mov_b32 v6, {OOB}
                v_cndmask_b32 v{vDW+q}, v5, v6, vcc''')
            a(f'''s_mul_i32 s88, s{sG}, 160
            s_add_u32 s88, s88, 1280
            s_lshr_b32 s9, s{sWP}, 1
            s_lshl_b32 s9, s9, 4
            s_lshl_b32 s8, s8, 2
            s_add_u32 s9, s9, s8
            s_mul_i32 s9, s9, 3072
            s_mul_i32 s89, s{sG}, 384
            s_add_u32 s89, s89, s9''')
        else:
            a(f'''s_lshl_b32 s9, s8, 2
            v_add_u32 v3, s9, v14
            v_lshrrev_b32 v4, 1, v15
            v_xor_b32 v3, v3, v4
            s_lshl_b32 s9, s8, 3
            v_add_u32 v4, s9, v14
            v_mul_u32_u24 v4, 3072, v4
            v_lshl_add_u32 v3, v3, 5, v4
            v_and_b32 v6, 1, v0
            v_lshl_add_u32 v{vDH}, v6, 4, v3''')
            for q in range(3):
                a(f'''s_lshl_b32 s9, s{sWP}, 6
                s_add_u32 s9, s9, {q*256}
                v_add_u32 v3, s9, v0
                v_mul_u32_u24 v4, 6554, v3
                v_lshrrev_b32 v4, 16, v4
                v_mul_u32_u24 v5, 10, v4
                v_sub_u32 v3, v3, v5''')
                self.kmap(5, 4, 6)
                a(f'''v_mul_u32_u24 v5, 3840, v5
                v_lshl_add_u32 v{vDW+q}, v3, 4, v5''')
            a(f'''s_mul_i32 s88, s{sG}, 160
            s_lshr_b32 s9, s{sWP}, 1
            s_mul_i32 s9, s9, {4*3072}
            s_mul_i32 s89, s{sG}, 384
            s_add_u32 s89, s89, s9
            s_add_u32 s89, s89, 128''')
        a(f'''s_mul_i32 s87, s{sRB}, {128*1280}
        s_mul_i32 s9, s{sWP}, 10240
        s_add_u32 s87, s87, s9
        s_lshl_b32 s{sDM}, s{sWP}, 10''')
        self.srds_common()
        self.srd(SRD_X, 16, 2048*1280)
        self.srd(SRD_Q, 18, 640*3840)
        self.srd(SRD_H, 24, 640*3072)
        L, C, lim = self.dma_list(typ)
        Lp = a.label('Lpro'); Ls = a.label('Lproskip'); Lx = a.label('Lprox')
        a(f's_mov_b32 s9, 0\n{Lp}:')
        a(self.dma_offsets())
        for d in L: a(d)
        a(f's_cmp_lt_u32 s{sWP}, {lim}\ns_cbranch_scc0 {Ls}')
        for d in C: a(d)
        a(f'''{Ls}:
        s_add_u32 s{sDM}, s{sDM}, {SZ}
        s_cmp_eq_u32 s9, 0
        s_cbranch_scc0 {Lx}''')
        self.load_epoch()
        self.srd(SRD_B1, 26, 3072)
        hp = sWP
        a(f'''s_lshr_b32 s8, s{sWP}, 1
        s_lshl_b32 s8, s8, 6
        s_mul_i32 s10, s{sG}, 384
        s_add_u32 s8, s8, s10
        {"s_add_u32 s8, s8, 256" if typ == 2 else ""}
        v_lshlrev_b32 v3, 3, v14
        buffer_load_dwordx2 v[{vB1}:{vB1+1}], v3, s[{SRD_B1}:{SRD_B1+3}], s8 offen
        buffer_load_dwordx2 v[{vB1+2}:{vB1+3}], v3, s[{SRD_B1}:{SRD_B1+3}], s8 offen offset:32
        {Lx}:
        s_add_u32 s9, s9, 1
        s_cmp_lt_u32 s9, 3
        s_cbranch_scc1 {Lp}
        s_lshl_b32 s{sDM}, s{sWP}, 10''')
        a(f's_lshr_b32 s8, s{sWP}, 1\ns_lshl_b32 s8, s8, 1')
        if typ == 1:
            a(f'''v_bfe_u32 v5, v12, 1, 2
            v_lshl_add_u32 v6, v12, 7, v13
            v_xor_b32 v5, s8, v5
            v_lshl_add_u32 v{vW}, v5, 5, v6
            v_add_u32 v{vW}, {L_H1}, v{vW}
            v_xor_b32 v{vW+1}, 32, v{vW}''')
        else:
            a(f'''s_add_u32 s8, s8, 4
            v_and_b32 v5, 7, v12
            v_lshl_add_u32 v6, v12, 8, v13
            v_xor_b32 v5, s8, v5
            v_lshl_add_u32 v{vW}, v5, 5, v6
            v_add_u32 v{vW}, {L_H2}, v{vW}
            v_xor_b32 v{vW+1}, 32, v{vW}''')
        self.zero_acc(2)
        a(f's_waitcnt vmcnt(20)')
        self.make_tag()

    def zero_acc(self, nt):
        a = self.a
        for i in range(16 * nt): a(f'v_mov_b32 v{ACC+i}, 0')
        for i in range(4 * nt): a(f'v_mov_b32 v{CS+i}, 0')

    def frag_reads(self, role, ks, buf):
        L = []
        xa = vXA0 if ks == 0 else vXA1
        xs = [f'ds_read_b128 {vr(XF[buf]+4*t, 4)}, v{xa} offset:{2048*t}' for t in range(4)]
        ws = []
        for T, (vb, off) in enumerate(role['tiles']):
            for j in range(2):
                ws.append(f'ds_read_b64_tr_b16 {vr(WF[buf]+4*T+2*j, 2)}, v{vb} offset:{off + role["rs8"]*(4*ks+j)}')
        L = [xs[0]] + ws[:2] + [xs[1]] + ws[2:4] + xs[2:] + ws[4:]
        if self.c.x_noreads: return []
        return L

    def mfmas(self, role, buf):
        nt = role['nt']; L = []
        for t in range(4):
            for T in range(nt):
                d = vr(ACC + 4*(t*nt + T), 4); x = vr(XF[buf]+4*t, 4); w = vr(WF[buf]+4*T, 4)
                A_, B_ = (x, w) if role['orient'] == 1 else (w, x)
                L.append(f'v_mfma_f32_16x16x32_bf16 {d}, {A_}, {B_}, {d}' if not self.c.x_nomfma else 's_nop 0')
        return L

    def colsum(self, role, buf):
        L = []
        if self.c.x_nocs or self.c.x_nomfma: return ['s_nop 0']
        one = vr(role['ones'], 4)
        for T in range(role['nt']):
            d = vr(CS + 4*T, 4); w = vr(WF[buf]+4*T, 4)
            A_, B_ = (one, w) if role['orient'] == 1 else (w, one)
            L.append(f'v_mfma_f32_16x16x32_bf16 {d}, {A_}, {B_}, {d}')
        return L

    def dots(self, role, buf):
        L = []
        if self.c.x_nodots: return L
        for r in range(4):
            for i, t in enumerate(role['stat']):
                x = XF[buf] + 4*t + r
                L.append(f'v_dot2c_f32_bf16 v{vST+2*i}, v{vONE}, v{x}')
                L.append(f'v_dot2c_f32_bf16 v{vST+2*i+1}, v{x}, v{x}')
        return L

    def main_loop(self, role):
        a = self.a; c = self.c
        typ = role['typ']; SZ = SZ1 if typ == 1 else SZ2
        nm = role['name']
        bases = [vXA0, vXA1] + sorted(set(vb for vb, _ in role['tiles']))
        self.stamp(2)
        a('s_waitcnt lgkmcnt(0)\ns_barrier')
        self.stamp(3)
        for r in self.frag_reads(role, 0, 0): a(r)
        Lp = f'L_loop_{nm}'
        a(f'{Lp}:\ns_waitcnt lgkmcnt(0)')
        m = self.mfmas(role, 0)
        fill = self.frag_reads(role, 1, 1) + self.dots(role, 0)
        per = 2 if role['dma'] else 1
        body = interleave(m, fill, per=(2 if len(fill) > len(m) else 1))
        for l in body: a(l)
        Ls = a.label('Lcs')
        a(f's_cmp_eq_u32 s{sRG}, 0\ns_cbranch_scc0 {Ls}')
        for l in self.colsum(role, 0): a(l)
        a(f'{Ls}:')
        a(f'''s_add_u32 s{sSLOT}, s{sSLOT}, 1
        s_cmp_eq_u32 s{sSLOT}, 3
        s_cselect_b32 s{sDELTA}, -2, 1
        s_cselect_b32 s{sSLOT}, 0, s{sSLOT}
        s_mul_i32 s{sDELTA}, s{sDELTA}, {SZ}''')
        for b in bases: a(f'v_add_u32 v{b}, s{sDELTA}, v{b}')
        if role['dma']:
            Lw = a.label('Lvw')
            a(f'''s_cmp_eq_u32 s{sIT}, 8
            s_cbranch_scc0 {Lw}
            s_waitcnt vmcnt(0)
            {Lw}:
            s_waitcnt vmcnt(10) lgkmcnt(0)''')
        else:
            a('s_waitcnt lgkmcnt(0)')
        self.stamp(32, dyn=True)
        a('s_barrier')
        self.stamp(44, dyn=True)
        if role.get('repack'): self.repack_blocks()
        m = self.mfmas(role, 1)
        reads = self.frag_reads(role, 0, 0)
        if role['dma']:
            L, C, lim = self.dma_list(typ)
            Ln = a.label('Lnodma'); Lj = a.label('Lj'); Lk = a.label('Lk')
            body = interleave(m[:4], reads, per=2)
            for l in body: a(l)
            a(f's_cmp_lt_u32 s{sIT}, {0 if c.x_nodma else 7}\ns_cbranch_scc0 {Ln}')
            a(self.dma_offsets())
            body = interleave(L[:4], m[4:], per=1)
            for l in body: a(l)
            for d in L[4:]: a(d)
            a(f's_cmp_lt_u32 s{sWP}, {lim}\ns_cbranch_scc0 {Lk}')
            for d in C: a(d)
            a(f'{Lk}:\ns_add_u32 s{sDM}, s{sDM}, s{sDELTA}\ns_branch {Lj}\n{Ln}:')
            for l in m[4:]: a(l)
            a(f'{Lj}:')
        else:
            fill = reads + self.dots(role, 1)
            body = interleave(m, fill, per=(2 if len(fill) > len(m) else 1))
            for l in body: a(l)
        Ls = a.label('Lcs')
        a(f's_cmp_eq_u32 s{sRG}, 1\ns_cbranch_scc0 {Ls}')
        for l in self.colsum(role, 1): a(l)
        a(f'''{Ls}:
        s_add_u32 s{sIT}, s{sIT}, 1
        s_cmp_lt_u32 s{sIT}, 10
        s_cbranch_scc1 {Lp}
        s_waitcnt lgkmcnt(0)''')
        self.stamp(4)

    def repack_setup(self):
        a = self.a
        a(f'''s_lshl_b32 s8, s{sWAVE}, 8
        s_add_u32 s8, s8, s2
        s_cmp_lt_u32 s8, 680
        s_cselect_b32 s{sRPV}, 1, 0
        s_min_u32 s8, s8, 679
        s_mul_i32 s9, s8, 6554
        s_lshr_b32 s9, s9, 16
        s_mul_i32 s10, s9, 10
        s_sub_u32 s10, s8, s10
        s_mul_i32 s11, s9, 3856
        s_lshr_b32 s11, s11, 16
        s_mul_i32 s12, s11, 17
        s_sub_u32 s12, s9, s12''')
        a(f'''s_lshl_b32 s13, s9, 6
        s_lshl_b32 s14, s10, 2
        s_add_u32 s13, s13, s14
        s_add_u32 s{sRPF}, s13, {WS_RPF}''')
        for tt in range(4):
            a(f'''s_lshl_b32 s13, s10, 2
            s_add_u32 s13, s13, {tt}
            s_mul_i32 s14, s13, 13108
            s_lshr_b32 s14, s14, 16
            s_mul_i32 s15, s14, 5
            s_sub_u32 s13, s13, s15
            s_mul_i32 s14, s14, 68
            s_add_u32 s14, s14, s9
            s_mul_i32 s14, s14, 5
            s_add_u32 s14, s14, s13
            s_lshl_b32 s14, s14, 10
            s_add_u32 s{sRPD+tt}, s14, {WS_B2}''')
        a(f'''s_mul_i32 s13, s11, 384
        s_lshl_b32 s14, s12, 5
        s_add_u32 s15, s14, 64
        s_add_u32 s8, s14, {192 + 64 - 128}
        s_cmp_ge_u32 s12, 4
        s_cselect_b32 s15, s8, s15
        s_sub_u32 s8, s14, 256
        s_cmp_ge_u32 s12, 8
        s_cselect_b32 s15, s8, s15
        s_sub_u32 s8, s14, {320 - 192}
        s_cmp_ge_u32 s12, 10
        s_cselect_b32 s15, s8, s15
        s_mul_i32 s9, s11, 160
        s_sub_u32 s8, s14, 384
        s_cmp_ge_u32 s12, 12
        s_cselect_b32 s13, s9, s13
        s_cselect_b32 s15, s8, s15
        s_sub_u32 s8, s14, {448 - 80}
        s_cmp_ge_u32 s12, 14
        s_cselect_b32 s15, s8, s15
        s_cmp_eq_u32 s12, 16
        s_cselect_b32 s15, 64, s15
        s_cselect_b32 s8, 80, 16
        s_add_u32 s13, s13, s15
        s_mul_i32 s{sRPS0}, s13, 1280
        s_lshl_b32 s10, s10, 7
        s_add_u32 s{sRPS0}, s{sRPS0}, s10
        s_mul_i32 s8, s8, 1280
        s_add_u32 s{sRPS1}, s{sRPS0}, s8''')
        a(f'''s_mov_b32 s{SRD_R+2}, {1536*1280}
        s_cmp_ge_u32 s12, 12
        s_cselect_b32 s{SRD_R}, s20, s28
        s_cselect_b32 s{SRD_R+1}, s21, s29
        s_cselect_b32 s{SRD_R+2}, {640*1280}, s{SRD_R+2}
        s_mov_b32 s{SRD_R+3}, 0x20000''')
        a(f'''v_lshrrev_b32 v3, 3, v0
        v_mul_u32_u24 v3, 1280, v3
        v_and_b32 v4, 7, v0
        v_lshl_add_u32 v{vRPG}, v4, 4, v3
        v_bfe_u32 v3, v0, 2, 2
        v_lshl_add_u32 v3, v14, 2, v3
        v_lshl_add_u32 v3, v3, 7, v13
        s_lshl_b32 s8, s{sWAVE}, 12
        s_add_u32 s8, s8, {L_RPK}
        v_add_u32 v{vRPL}, s8, v3''')

    def repack_blocks(self):
        a = self.a; c = self.c
        L1 = a.label('Lrp1'); L2 = a.label('Lrp2'); L3 = a.label('Lrp3'); L4 = a.label('Lrp4')
        a(f'''s_cmp_eq_u32 s{sRPV}, 0
        s_cbranch_scc1 {L3}
        s_cmp_eq_u32 s{sIT}, {c.rp_issue}
        s_cbranch_scc0 {L1}
        s_lshl_b32 s8, s{sWAVE}, 12
        s_add_u32 s8, s8, {L_RPK}''')
        for n in range(4):
            base = sRPS0 if n < 2 else sRPS1
            a(f'''s_add_u32 m0, s8, {n*1024}
            s_add_u32 s9, s{base}, {(n & 1) * 10240}
            buffer_load_dwordx4 v{vRPG}, s[{SRD_R}:{SRD_R+3}], s9 offen lds''')
        a(f'''{L1}:
        s_cmp_eq_u32 s{sIT}, {c.rp_store}
        s_cbranch_scc0 {L2}
        s_waitcnt vmcnt(0)''')
        for tt in range(4):
            for jj in range(2):
                a(f'ds_read_b64_tr_b16 {vr(vRPT+4*tt+2*jj, 2)}, v{vRPL} offset:{2048*jj + 32*tt}')
        a(f'v_lshlrev_b32 v{vT0}, 4, v0\ns_waitcnt lgkmcnt(0)')
        for tt in range(4):
            a(f'buffer_store_dwordx4 {vr(vRPT+4*tt, 4)}, v{vT0}, s[{SRD_WS}:{SRD_WS+3}], s{sRPD+tt} offen sc1')
        a(f'''{L2}:
        s_cmp_eq_u32 s{sIT}, {c.rp_flag}
        s_cbranch_scc0 {L3}
        s_waitcnt vmcnt(0)''')
        self.flag_store(sRPF)
        a(f'''s_cmp_eq_u32 s{sWAVE}, 0
        s_cbranch_scc0 {L3}
        s_lshl_b32 s8, s2, 2''')
        a(f's_add_u32 s8, s8, {WS_ALIVE}')
        self.flag_store(8)
        a(f'{L3}:')

    def heavy_common(self):
        a = self.a
        a('L_heavy:')
        self.srds_common()
        self.load_epoch()
        self.repack_setup()
        a(f'''v_mov_b32 v3, 0
        v_mov_b32 v4, {L_CNT}
        v_lshl_add_u32 v4, v0, 2, v4
        s_mov_b64 exec, 0xffff
        ds_write_b32 v4, v3
        s_mov_b64 exec, -1''')
        for i in range(4): a(f'v_mov_b32 v{vST+i}, 0')
        a(f'''s_lshr_b32 s{sWP}, s{sWAVE}, 1
        s_cmp_eq_u32 s{sTYPE}, 0
        s_cbranch_scc0 L_heavy2''')

    def kv_prologue(self):
        a = self.a
        a(f'''s_mul_i32 s8, s{sWP}, 80
        s_add_u32 s8, s8, {L_W}
        v_mul_u32_u24 v5, 352, v12
        v_add3_u32 v{vW}, v5, v13, s8
        v_cmp_lt_u32 vcc, 8, v13
        v_mov_b32 v5, 64
        v_mov_b32 v6, 160
        v_cndmask_b32 v5, v5, v6, vcc
        v_add_u32 v{vW+1}, v5, v{vW}''')
        L1 = a.label('Lkva'); L2 = a.label('Lkvb')
        a(f'''s_mul_i32 s8, s{sWP}, 10
        v_add_u32 v5, s8, v14
        v_mul_u32_u24 v5, 200, v5
        v_mov_b32 v116, {OOB}
        s_cmp_eq_u32 s{sRG}, 0
        s_cbranch_scc0 {L1}''')
        def prod(dst, aa, b):
            if aa == 0: a('s_mov_b64 s[10:11], 0')
            elif aa == 1: a('v_cmp_le_u32 s[10:11], 1, v14')
            else: a('s_mov_b64 s[10:11], -1')
            if b == 2:
                a(f'''v_add_u32 v117, 20, v15
                v_subrev_u32 v118, 8, v15
                v_cmp_le_u32 vcc, 8, v15
                v_cndmask_b32 v117, v117, v118, vcc
                s_andn2_b64 s[14:15], vcc, s[10:11]
                v_cmp_gt_u32 vcc, 5, v15
                s_or_b64 s[14:15], s[14:15], vcc''')
            elif b == 3:
                a(f'''v_add_u32 v117, 8, v15
                v_subrev_u32 v118, 12, v15
                v_cmp_le_u32 vcc, 12, v15
                v_cndmask_b32 v117, v117, v118, vcc
                s_xnor_b64 s[14:15], vcc, s[10:11]''')
            else:
                a(f'''v_add_u32 v117, 4, v15
                s_mov_b64 s[14:15], s[10:11]''')
            if aa == 2:
                a('v_cmp_gt_u32 vcc, 2, v14\ns_and_b64 s[14:15], s[14:15], vcc')
            a(f'''v_lshl_add_u32 v117, v117, 3, v5
            v_add_u32 v117, {800*aa}, v117
            v_cndmask_b32 v{dst}, v116, v117, s[14:15]''')
        prods = self.PRODS
        for i in range(4): prod(vKVA + i, *prods[i])
        a(f's_branch {L2}\n{L1}:')
        for i in range(4): prod(vKVA + i, *prods[4 + i])
        a(f'{L2}:')
        self.zero_acc(5)
        a('s_waitcnt vmcnt(0)')
        self.make_tag()

    PRODS = [(0, 2), (0, 3), (1, 2), (1, 3), (1, 4), (2, 2), (2, 3), (2, 4)]

    def kvdest(self, dst, vn):
        a = self.a
        a(f'''v_mul_u32_u24 v116, 2622, v{vn}
        v_lshrrev_b32 v116, 16, v116
        v_mul_u32_u24 v117, 25, v116
        v_sub_u32 v117, v{vn}, v117
        v_mul_u32_u24 v118, 205, v116
        v_lshrrev_b32 v118, 10, v118
        v_lshrrev_b32 v119, 3, v116
        v_mul_u32_u24 v120, 20, v118
        v_add_u32 v120, v120, v117
        v_lshrrev_b32 v121, 4, v120
        v_and_b32 v120, 15, v120
        v_lshl_add_u32 v122, v121, 1, v119
        v_cmp_le_u32 vcc, 3, v121
        v_subbrev_co_u32 v122, vcc, 0, v122, vcc
        v_mul_u32_u24 v123, 5, v118
        v_add_u32 v123, v123, v117
        v_subrev_u32 v123, 20, v123
        v_lshrrev_b32 v124, 2, v123
        v_and_b32 v123, 3, v123
        v_lshlrev_b32 v123, 2, v123
        v_and_b32 v125, 3, v124
        v_add_u32 v123, v123, v125
        v_lshrrev_b32 v124, 2, v124
        v_lshl_add_u32 v124, v124, 1, v119
        v_add_u32 v124, 10, v124
        v_cmp_le_u32 vcc, 20, v117
        v_cndmask_b32 v122, v122, v124, vcc
        v_cndmask_b32 v120, v120, v123, vcc
        v_and_b32 v123, 3, v116
        v_lshl_add_u32 v120, v123, 4, v120
        v_lshl_add_u32 v120, v122, 6, v120
        v_bfe_u32 v123, v116, 2, 1
        v_lshl_add_u32 v120, v120, 1, v123
        v_lshlrev_b32 v120, 3, v120
        v_add_u32 v120, {L_KVX}, v120
        v_mov_b32 v123, {L_DUMMY}
        v_cmp_gt_u32 vcc, 500, v{vn}
        v_cndmask_b32 v{dst}, v123, v120, vcc''')

    def t2heavy_prologue(self):
        a = self.a
        a('L_heavy2:')
        a(f'''s_lshl_b32 s8, s{sWAVE}, 7
        v_lshl_add_u32 v127, v0, 1, s8
        v_add_u32 v128, 1, v127''')
        self.kvdest(205, 127)
        self.kvdest(206, 128)
        a(f'''s_cmp_eq_u32 s{sWP}, 0
        s_cbranch_scc0 L_h4''')
        a(f'''v_mul_u32_u24 v5, 160, v12
        v_add_u32 v5, v5, v13
        v_add_u32 v{vW}, {L_W}, v5''')
        self.zero_acc(5)
        a('s_waitcnt vmcnt(0)')
        self.make_tag()

    def h4_prologue(self):
        a = self.a
        a('L_h4:')
        self.srd(SRD_B1, 26, 3072)
        a(f'''s_mul_i32 s8, s{sG}, 384
        s_add_u32 s8, s8, 128
        v_lshlrev_b32 v3, 3, v14''')
        for T in range(4):
            a(f'buffer_load_dwordx2 v[{vB1+2*T}:{vB1+2*T+1}], v3, s[{SRD_B1}:{SRD_B1+3}], s8 offen offset:{32*T}')
        a(f'''v_and_b32 v5, 7, v12
        v_lshl_add_u32 v6, v12, 8, v13
        v_lshl_add_u32 v{vW}, v5, 5, v6
        v_add_u32 v{vW}, {L_H2}, v{vW}
        v_xor_b32 v{vW+1}, 32, v{vW}
        v_xor_b32 v{vW+2}, 64, v{vW}
        v_xor_b32 v{vW+3}, 96, v{vW}''')
        self.zero_acc(4)
        a('s_waitcnt vmcnt(0)')
        self.make_tag()

    def exchange(self, role):
        a = self.a
        S0, Q0, S1, Q1 = vST, vST+1, vST+2, vST+3
        if role['stat']:
            t0 = role['stat'][0]
            a(f'''s_nop 2
            v_permlane16_swap_b32 v{S0}, v{S1}
            v_permlane16_swap_b32 v{Q0}, v{Q1}
            v_add_f32 v{S0}, v{S0}, v{S1}
            v_add_f32 v{Q0}, v{Q0}, v{Q1}
            v_permlane32_swap_b32 v{S0}, v{Q0}
            v_add_f32 v{S0}, v{S0}, v{Q0}
            v_mov_b32 v{Q0}, v{S0}
            v_permlane32_swap_b32 v{S0}, v{Q0}
            v_mul_f32 v{S0}, {f2u(1/640)}, v{S0}
            v_mul_f32 v{Q0}, {f2u(1/640)}, v{Q0}
            v_fma_f32 v{Q0}, -v{S0}, v{S0}, v{Q0}
            v_max_f32 v{Q0}, 0, v{Q0}''')
            def rbf(r):
                a(f'v_cvt_pk_bf16_f32 v{r}, v{r}, v{r}\nv_and_b32 v{r}, 0xffff0000, v{r}')
            rbf(S0); rbf(Q0)
            a(f'v_add_f32 v{Q0}, {f2u(1e-5)}, v{Q0}'); rbf(Q0)
            a(f'v_sqrt_f32 v{Q0}, v{Q0}'); rbf(Q0)
            a(f'''v_rcp_f32 v{Q0}, v{Q0}
            v_mul_f32 v{S0}, -v{S0}, v{Q0}
            v_cmp_gt_u32 vcc, 32, v0
            v_and_b32 v{S1}, 31, v0
            v_lshrrev_b32 v{Q1}, 5, v0
            v_lshl_add_u32 v{S1}, v{Q1}, 7, v{S1}
            v_cndmask_b32 v{S0}, v{S0}, v{Q0}, vcc
            s_lshl_b32 s8, s{sRG}, 8
            s_add_u32 s8, s8, {L_STAT + 64*t0}
            v_lshl_add_u32 v{S1}, v{S1}, 2, s8
            ds_write_b32 v{S1}, v{S0}''')
        a(f's_mul_i32 s8, s{sWAVE}, 320\ns_add_u32 s8, s8, {L_CSX}')
        if role['orient'] == 1:
            a(f'''v_lshl_add_u32 v{vT0}, v0, 2, s8
            s_mov_b64 exec, 0xffff''')
            for T in range(role['nt']):
                a(f'ds_write_b32 v{vT0}, v{CS+4*T} offset:{64*T}')
        else:
            a(f'''v_lshl_add_u32 v{vT0}, v0, 0, s8
            s_mov_b32 exec_lo, 0x00010001
            s_mov_b32 exec_hi, 0x00010001''')
            for T in range(role['nt']):
                a(f'ds_write_b128 v{vT0}, {vr(CS+4*T, 4)} offset:{64*T}')
        a('s_mov_b64 exec, -1')
        if role.get('zero_kvf'):
            a(f'''s_lshl_b32 s8, s{sWAVE}, 12
            s_add_u32 s8, s8, {L_KVX}
            v_lshl_add_u32 v{vT0}, v0, 4, s8''')
            for i in range(4): a(f'v_mov_b32 v{116+i}, 0')
            for i in range(4): a(f'ds_write_b128 v{vT0}, v[116:119] offset:{1024*i}')
        self.stamp(5)
        a('s_waitcnt lgkmcnt(0)\ns_barrier')
        self.stamp(6)
        early = role['dma']
        n = 9 if early else 8
        a(f'''s_{"sub" if early else "add"}_u32 s8, s{sWAVE}, {4 if early else 0}
        s_mul_i32 s{sU0}, s8, 17
        {"" if early else f"s_add_u32 s{sU0}, s{sU0}, 9"}
        s_mul_i32 s9, s{sCB}, 5
        s_lshr_b32 s9, s9, 2
        s_lshl_b32 s9, s9, 2
        s_lshl_b32 s10, s{sU0}, 6
        s_add_u32 s9, s9, s10
        s_add_u32 s9, s9, {WS_RPF}
        v_min_u32 v{vT0}, {2*n-1}, v0
        v_and_b32 v{vT1}, 1, v{vT0}
        v_lshrrev_b32 v{vT0}, 1, v{vT0}
        v_lshlrev_b32 v{vT0}, 6, v{vT0}
        v_lshl_add_u32 v{vT0}, v{vT1}, 2, v{vT0}
        v_add_u32 v{vP0}, s9, v{vT0}
        buffer_load_dword v{vP1}, v{vP0}, s[{SRD_WS}:{SRD_WS+3}], 0 offen sc1''')

    def read_partner_cs(self, role, dst):
        a = self.a
        a(f's_xor_b32 s8, s{sWAVE}, 1\ns_mul_i32 s8, s8, 320\ns_add_u32 s8, s8, {L_CSX}')
        if role['orient'] == 1:
            a(f'v_and_b32 v{vT0}, 15, v0\nv_lshl_add_u32 v{vT0}, v{vT0}, 2, s8')
            for T in range(role['nt']): a(f'ds_read_b32 v{dst+T}, v{vT0} offset:{64*T}')
        else:
            a(f'v_and_b32 v{vT0}, 48, v0\nv_add_u32 v{vT0}, s8, v{vT0}')
            for T in range(role['nt']): a(f'ds_read_b128 {vr(dst+4*T, 4)}, v{vT0} offset:{64*T}')

    def read_tok_stats(self, dst):
        a = self.a
        a(f'''s_lshl_b32 s8, s{sRG}, 8
        s_add_u32 s8, s8, {L_STAT}
        v_and_b32 v{vT1}, 15, v0
        v_lshl_add_u32 v{vT1}, v{vT1}, 2, s8''')
        for t in range(4):
            a(f'ds_read2_b32 {vr(dst+2*t, 2)}, v{vT1} offset0:{16*t} offset1:{128+16*t}')

    def a_offset(self, sdst, u_add_code):
        a = self.a
        a(u_add_code)
        a(f'''s_lshl_b32 s10, s{sRB}, 1
        s_add_u32 s10, s10, s{sRG}
        s_lshl_b32 s11, s10, 9
        s_lshl_b32 s12, s9, 2
        s_add_u32 s11, s11, s12
        s_add_u32 s{sdst+1}, s11, {WS_ROWF}
        s_mul_i32 s10, s10, 68
        s_add_u32 s10, s10, s9
        s_lshl_b32 s10, s10, 12
        s_add_u32 s{sdst}, s10, {WS_A}''')

    def h_epilogue(self, role):
        a = self.a
        nt = role['nt']; typ = role['typ']
        PC = 116
        TS = 132
        BF = 140
        TM = 156
        self.read_partner_cs(role, PC)
        self.read_tok_stats(TS)
        if typ == 1:
            code = f'''s_lshr_b32 s8, s{sG}, 1
            s_mul_i32 s9, s8, 17
            s_and_b32 s8, s{sG}, 1
            s_lshl_b32 s8, s8, 1
            s_add_u32 s9, s9, s8
            s_lshr_b32 s8, s{sWP}, 1
            s_add_u32 s9, s9, s8
            s_add_u32 s9, s9, 8'''
        else:
            code = f'''s_lshr_b32 s8, s{sG}, 1
            s_mul_i32 s9, s8, 17
            s_and_b32 s8, s{sG}, 1
            s_lshl_b32 s8, s8, 2
            s_add_u32 s9, s9, s8'''
            if nt == 2:
                code += f'\ns_lshr_b32 s8, s{sWP}, 1\ns_add_u32 s9, s9, s8\ns_add_u32 s9, s9, 2'
        self.a_offset(sXO, code)
        for T in range(nt):
            for h in range(2):
                a(f'v_lshlrev_b32 v{BF+4*T+2*h}, 16, v{vB1+2*T+h}')
                a(f'v_and_b32 v{BF+4*T+2*h+1}, 0xffff0000, v{vB1+2*T+h}')
        a(f'v_lshlrev_b32 v{vW}, 4, v0')
        a('s_waitcnt lgkmcnt(0)')
        for i in range(4 * nt): a(f'v_add_f32 v{CS+i}, v{CS+i}, v{PC+i}')
        for st in range(nt // 2):
            for t in range(4):
                rs, nm = TS + 2*t, TS + 2*t + 1
                OUT = TM + 40 + 4 * (t & 1)
                for half in range(2):
                    T = 2*st + half
                    acc = ACC + 4*(t*nt + T)
                    H = [TM + i for i in range(4)]; E = [TM + 4 + i for i in range(4)]; D = [TM + 8 + i for i in range(4)]
                    for r in range(4): a(f'v_fma_f32 v{H[r]}, v{nm}, v{CS+4*T+r}, v{BF+4*T+r}')
                    for r in range(4): a(f'v_fma_f32 v{H[r]}, v{acc+r}, v{rs}, v{H[r]}')
                    for r in range(4): a(f'v_mul_f32 v{E[r]}, s{sLOG2E}, v{H[r]}')
                    for r in range(4): a(f'v_exp_f32 v{E[r]}, v{E[r]}')
                    for r in range(4): a(f'v_add_f32 v{D[r]}, 2.0, v{E[r]}')
                    for r in range(4): a(f'v_fma_f32 v{D[r]}, v{E[r]}, v{D[r]}, 2.0')
                    for r in range(4): a(f'v_rcp_f32 v{D[r]}, v{D[r]}')
                    for r in range(4): a(f'v_mul_f32 v{D[r]}, v{H[r]}, v{D[r]}')
                    for r in range(4): a(f'v_fma_f32 v{H[r]}, -2.0, v{D[r]}, v{H[r]}')
                    a(f'v_cvt_pk_bf16_f32 v{OUT+2*half}, v{H[0]}, v{H[1]}')
                    a(f'v_cvt_pk_bf16_f32 v{OUT+2*half+1}, v{H[2]}, v{H[3]}')
                a(f'buffer_store_dwordx4 {vr(OUT, 4)}, v{vW}, s[{SRD_WS}:{SRD_WS+3}], s{sXO} offen offset:{1024*t} sc1')
            if st + 1 < nt // 2: a(f's_add_u32 s{sXO}, s{sXO}, 4096')
        self.stamp(7)
        a('s_waitcnt vmcnt(0)')
        self.flag_store(sQO, nlanes=nt // 2)
        self.stamp(8)

    def kv_epilogue(self, role):
        a = self.a
        RS, NM, PC, TM = 116, 132, 148, 156
        a(f'''s_lshl_b32 s8, s{sRG}, 8
        s_add_u32 s8, s8, {L_STAT}
        v_and_b32 v{vT1}, 48, v0
        v_add_u32 v{vT1}, s8, v{vT1}''')
        for t in range(4):
            a(f'ds_read_b128 {vr(RS+4*t, 4)}, v{vT1} offset:{64*t}')
            a(f'ds_read_b128 {vr(NM+4*t, 4)}, v{vT1} offset:{512+64*t}')
        self.read_partner_cs(role, PC)
        a(f'''s_mov_b32 s10, 0x00ff00ff
        s_mov_b32 s11, 0x00ff00ff
        v_mov_b32 v{vW}, s{sEPS6}
        s_waitcnt lgkmcnt(0)''')
        for T in range(5): a(f'v_add_f32 v{PC+T}, v{PC+T}, v{CS+4*T}')
        KD = 180
        KD = [96, 100, 104, 108, 112, 212, 216, 220]
        def F(p, T): return ACC + 4*((2*p)*5 + T)
        def F2(p): return ACC + 4*((2*p+1)*5 + 2)
        for p in range(2):
            for T in range(5):
                for tt in range(2):
                    t = 2*p + tt
                    acc = ACC + 4*(t*5 + T)
                    V = [TM + 8*tt + i for i in range(4)]; E = [TM + 8*tt + 4 + i for i in range(4)]
                    if T <= 2:
                        if T == 2:
                            W = [TM + 16 + i for i in range(4)]
                            for r in range(4): a(f'v_mul_f32 v{W[r]}, v{NM+4*t+r}, v{PC+T}')
                            for r in range(4): a(f'v_fma_f32 v{W[r]}, v{acc+r}, v{RS+4*t+r}, v{W[r]}')
                            for r in range(4): a(f'v_add_f32 v{V[r]}, s{sEPS6}, v{W[r]}')
                        else:
                            for r in range(4): a(f'v_fma_f32 v{V[r]}, v{NM+4*t+r}, v{PC+T}, v{vW}')
                            for r in range(4): a(f'v_fma_f32 v{V[r]}, v{acc+r}, v{RS+4*t+r}, v{V[r]}')
                        for r in range(4): a(f'v_mul_f32 v{E[r]}, s{sLOG2E}, v{V[r]}')
                        for r in range(4): a(f'v_exp_f32_e64 v{E[r]}, v{E[r]} clamp')
                        for r in range(4): a(f'v_max_f32 v{V[r]}, s{sEPS6}, v{V[r]}')
                        for r in range(4): a(f'v_add_f32 v{V[r]}, v{V[r]}, v{E[r]}')
                        if T == 2:
                            for r in range(4): a(f'v_cndmask_b32 v{V[r]}, v{W[r]}, v{V[r]}, s[10:11]')
                    else:
                        for r in range(4): a(f'v_mul_f32 v{V[r]}, v{NM+4*t+r}, v{PC+T}')
                        for r in range(4): a(f'v_fma_f32 v{V[r]}, v{acc+r}, v{RS+4*t+r}, v{V[r]}')
                for tt in range(2):
                    V = [TM + 8*tt + i for i in range(4)]
                    a(f'v_cvt_pk_bf16_f32 v{F(p,T)+2*tt}, v{V[0]}, v{V[1]}')
                    a(f'v_cvt_pk_bf16_f32 v{F(p,T)+2*tt+1}, v{V[2]}, v{V[3]}')
                if T == 2:
                    for i in range(4): a(f'v_cndmask_b32 v{F2(p)+i}, v{F(p,2)+i}, v{vONE}, s[10:11]')
            for i, (aa, b) in enumerate(self.PRODS):
                B_ = F2(p) if b == 2 else F(p, b)
                d = vr(KD[i], 4)
                a(f'v_mfma_f32_16x16x32_bf16 {d}, {vr(F(p,aa),4)}, {vr(B_,4)}, {d if p else 0}')
        self.stamp(7)
        L1 = a.label('Lkx'); L2 = a.label('Lky')
        a(f'''s_lshl_b32 s8, s{sWAVE}, 12
        s_add_u32 s8, s8, {L_KVX}
        v_lshl_add_u32 v{vW}, v0, 4, s8
        s_xor_b32 s9, s{sWAVE}, 1
        s_lshl_b32 s9, s9, 12
        s_add_u32 s9, s9, {L_KVX}
        v_lshl_add_u32 v{vW+1}, v0, 4, s9
        s_lshl_b32 s9, s{sWAVE}, 2
        s_add_u32 s9, s9, {L_CNT}
        v_mov_b32 v{vW+2}, s9
        v_xor_b32 v{vW+3}, 4, v{vW+2}
        s_lshl_b32 s8, s{sG}, 4
        s_add_u32 s8, s8, s{sRB}
        s_lshl_b32 s{sXO}, s8, 12
        s_add_u32 s{sXO}, s{sXO}, {WS_KVP}
        s_lshl_b32 s8, s8, 4
        s_lshl_b32 s9, s{sWAVE}, 2
        s_add_u32 s8, s8, s9
        s_add_u32 s{sQO}, s8, {WS_KVF}
        s_cmp_eq_u32 s{sRG}, 0
        s_cbranch_scc0 {L1}''')
        assert (L_KVX % 8192) == 4096 or True
        for rg in range(2):
            keep = range(4*rg, 4*rg + 4); send = range(4*(1-rg), 4*(1-rg) + 4)
            for n, i in enumerate(send): a(f'ds_write_b128 v{vW}, {vr(KD[i],4)} offset:{1024*n}')
            a(f's_waitcnt lgkmcnt(0)\nds_write_b32 v{vW+2}, v{vONE}')
            Lw = a.label('Lkw'); Ld = a.label('Lkd')
            a(f'''s_mov_b32 s8, 0
            {Lw}:
            ds_read_b32 v{vT1}, v{vW+3}
            s_add_u32 s8, s8, 1
            s_cmp_ge_u32 s8, {self.c.poll_limit}
            s_cbranch_scc1 {Ld}
            s_waitcnt lgkmcnt(0)
            v_cmp_eq_u32 vcc, 0, v{vT1}
            s_cbranch_vccnz {Lw}
            {Ld}:''')
            for n in range(4): a(f'ds_read_b128 {vr(TM+4*n,4)}, v{vW+1} offset:{1024*n}')
            a('s_waitcnt lgkmcnt(0)')
            for n, i in enumerate(keep):
                for r in range(4): a(f'v_add_f32 v{TM+4*n+r}, v{TM+4*n+r}, v{KD[i]+r}')
                a(f'v_cvt_pk_bf16_f32 v{TM+16+2*n}, v{TM+4*n}, v{TM+4*n+1}')
                a(f'v_cvt_pk_bf16_f32 v{TM+16+2*n+1}, v{TM+4*n+2}, v{TM+4*n+3}')
                a(f'buffer_store_dwordx2 {vr(TM+16+2*n,2)}, v{vKVA+n}, s[{SRD_WS}:{SRD_WS+3}], s{sXO} offen sc1')
            if rg == 0: a(f's_branch {L2}\n{L1}:')
        a(f'{L2}:\ns_waitcnt vmcnt(0)')
        self.flag_store(sQO)
        self.stamp(8)

    def q_phi(self, role):
        a = self.a
        PC, TS, TM = 116, 136, 144
        self.read_partner_cs(role, PC)
        self.read_tok_stats(TS)
        a(f'v_mov_b32 v{vW}, s{sEPS6}\ns_waitcnt lgkmcnt(0)')
        for i in range(20): a(f'v_add_f32 v{CS+i}, v{CS+i}, v{PC+i}')
        for t in range(4):
            rs, nm = TS + 2*t, TS + 2*t + 1
            for T in range(5):
                acc = ACC + 4*(t*5 + T)
                V = [TM + 8*(T & 1) + i for i in range(4)]; E = [TM + 8*(T & 1) + 4 + i for i in range(4)]
                for r in range(4): a(f'v_fma_f32 v{V[r]}, v{nm}, v{CS+4*T+r}, v{vW}')
                for r in range(4): a(f'v_fma_f32 v{V[r]}, v{acc+r}, v{rs}, v{V[r]}')
                for r in range(4): a(f'v_mul_f32 v{E[r]}, s{sLOG2E}, v{V[r]}')
                for r in range(4): a(f'v_exp_f32_e64 v{E[r]}, v{E[r]} clamp')
                for r in range(4): a(f'v_max_f32 v{V[r]}, s{sEPS6}, v{V[r]}')
                for r in range(4): a(f'v_add_f32 v{V[r]}, v{V[r]}, v{E[r]}')
                d = ACC + 12*t + 2*T
                a(f'v_cvt_pk_bf16_f32 v{d}, v{V[0]}, v{V[1]}')
                a(f'v_cvt_pk_bf16_f32 v{d+1}, v{V[2]}, v{V[3]}')
            a(f'v_mov_b32 v{ACC+12*t+10}, 0\nv_mov_b32 v{ACC+12*t+11}, 0')
        self.stamp(8)

    def kv_gather(self):
        a = self.a
        LD = 68
        SUM = 132
        a(f'''s_lshl_b32 s8, s{sG}, 8
        s_add_u32 s8, s8, {WS_KVF}
        v_lshl_add_u32 v{vW}, v0, 2, s8''')
        self.poll(vW, vW+1, 'kv')
        self.stamp(9)
        a(f'''s_lshl_b32 s8, s{sWAVE}, 10
        v_lshl_add_u32 v{vW}, v0, 4, s8
        s_lshl_b32 s9, s{sG}, 16
        s_add_u32 s9, s9, {WS_KVP}''')
        for p in range(16):
            a(f'buffer_load_dwordx4 {vr(LD+4*p,4)}, v{vW}, s[{SRD_WS}:{SRD_WS+3}], s9 offen sc1')
            if p < 15: a('s_add_u32 s9, s9, 4096')
        a('s_mov_b32 s10, 0x00003f80\ns_mov_b32 s11, 0x3f800000')
        for i in range(8): a(f'v_mov_b32 v{SUM+i}, 0')
        for p in range(16):
            a(f's_waitcnt vmcnt({15-p})')
            for r in range(4): a(f'v_dot2c_f32_bf16 v{SUM+2*r}, s10, v{LD+4*p+r}')
            for r in range(4): a(f'v_dot2c_f32_bf16 v{SUM+2*r+1}, s11, v{LD+4*p+r}')
        for r in range(4): a(f'v_cvt_pk_bf16_f32 v{LD+r}, v{SUM+2*r}, v{SUM+2*r+1}')
        a(f'''ds_write_b64 v205, {vr(LD,2)}
        ds_write_b64 v206, {vr(LD+2,2)}
        v_mov_b32 v{vW}, {L_CNT + 32}
        v_mov_b32 v{vW+1}, 1
        s_waitcnt lgkmcnt(0)
        s_mov_b64 exec, 1
        ds_add_u32 v{vW}, v{vW+1}
        s_mov_b64 exec, -1''')
        self.stamp(10)

    def q_out(self):
        a = self.a
        KF = 64
        D = [120, 156]
        OUT = 184
        self.lds_wait(L_CNT + 32, 4, 'kvf')
        self.stamp(11)
        fidx = [0, 2, 3, 4, 5, 6, 7, 8, 9, 10, 11, 12, 13, 14]
        reg = {f: KF + 4*n for n, f in enumerate(fidx)}
        a(f'v_lshlrev_b32 v{vW}, 4, v0\nv_add_u32 v{vW+1}, {L_KVX}, v{vW}')
        for f in fidx: a(f'ds_read_b128 {vr(reg[f],4)}, v{vW+1} offset:{1024*f}')
        code = f'''s_lshr_b32 s8, s{sG}, 1
        s_mul_i32 s9, s8, 17
        s_and_b32 s13, s{sG}, 1
        s_lshl_b32 s8, s13, 1
        s_add_u32 s9, s9, s8
        s_add_u32 s9, s9, 12'''
        self.a_offset(sXO, code)
        a(f'''s_mul_i32 s8, s13, {(-8192 + 512) & 0xffffffff}
        s_add_u32 s{sHO}, s{sXO}, s8
        s_add_u32 s{sHO}, s{sHO}, 16384
        s_add_u32 s{sT0}, s{sXO}, 4096
        v_lshlrev_b32 v{vW+2}, 3, v0
        s_waitcnt lgkmcnt(0)''')
        num = {0: [(0, 0)], 1: [(2, 0), (3, 1)], 2: [(4, 0), (5, 1)], 3: [(6, 1), (7, 2)], 4: [(8, 1), (9, 2)],
               5: [(10, 0), (11, 1), (12, 2)], 6: [(13, 1), (14, 2)]}
        def mf(t):
            L = []; d0 = D[t & 1]
            for J in (5, 6, 0, 1, 2, 3, 4):
                for n, (f, ks) in enumerate(num[J]):
                    d = vr(d0 + 4*J, 4)
                    L.append(f'v_mfma_f32_16x16x32_bf16 {d}, {vr(reg[f],4)}, {vr(ACC+12*t+4*ks,4)}, {d if n else 0}')
            return L
        def post(t):
            L = []; d0 = D[t & 1]
            den = [d0+20, d0+21, d0+22, d0+23, d0+24]
            for j in range(5): L.append(f'v_add_f32 v{den[j]}, s{sEPS6}, v{den[j]}')
            for j in range(5): L.append(f'v_rcp_f32 v{den[j]}, v{den[j]}')
            o = OUT + 0
            for j in range(5):
                for r in range(4): L.append(f'v_mul_f32 v{d0+4*j+r}, v{d0+4*j+r}, v{den[j]}')
                L.append(f'v_cvt_pk_bf16_f32 v{o+2*j}, v{d0+4*j}, v{d0+4*j+1}')
                L.append(f'v_cvt_pk_bf16_f32 v{o+2*j+1}, v{d0+4*j+2}, v{d0+4*j+3}')
                if j == 1: L.append(f'buffer_store_dwordx4 {vr(o,4)}, v{vW}, s[{SRD_WS}:{SRD_WS+3}], s{sXO} offen offset:{1024*t} sc1')
                if j == 3: L.append(f'buffer_store_dwordx4 {vr(o+4,4)}, v{vW}, s[{SRD_WS}:{SRD_WS+3}], s{sT0} offen offset:{1024*t} sc1')
                if j == 4: L.append(f'buffer_store_dwordx2 {vr(o+8,2)}, v{vW+2}, s[{SRD_WS}:{SRD_WS+3}], s{sHO} offen offset:{1024*t} sc1')
            return L
        for l in mf(0): a(l)
        for t in range(4):
            if t < 3:
                for l in interleave(mf(t+1), post(t), per=3): a(l)
            else:
                for l in post(t): a(l)
        self.stamp(12)
        a('s_waitcnt vmcnt(0)')
        self.flag_store(sQO)
        self.stamp(13)

    AB = [96, 112, 128]
    BB = [156, 176, 196, 216, 236]

    def p2_mfma(self, ab, bb, first):
        L = []
        for t in range(4):
            for j in range(5):
                d = vr(ACC + 4*(5*t + j), 4)
                L.append(f'v_mfma_f32_16x16x32_bf16 {d}, {vr(bb+4*j,4)}, {vr(ab+4*t,4)}, {0 if first else d}')
        return L

    def p2_common_setup(self, early):
        a = self.a
        self.stamp_move()
        self.stamp(14)
        self.poll(vP0, vP1, 'rp', pre_issued=True)
        self.stamp(15)
        a(f'''s_mul_i32 s8, s{sCB}, 68
        s_add_u32 s8, s8, s{sU0}
        s_mul_i32 s8, s8, 5120
        s_add_u32 s{sHO}, s8, {WS_B2}
        s_mul_i32 s8, s{sRB2}, 68
        s_add_u32 s8, s8, s{sU0}
        s_lshl_b32 s8, s8, 12
        s_add_u32 s{sAO}, s8, {WS_A}
        s_and_b32 s8, s{sWAVE}, 3
        s_mul_i32 s{sDM}, s8, {PAIR}
        {"" if early else f"s_add_u32 s{sDM}, s{sDM}, 20480"}
        v_lshlrev_b32 v{vW}, 4, v0
        v_add_u32 v{vW+1}, s{sDM}, v{vW}''')
        for k in range(5):
            for j in range(5):
                if j == 4:
                    a(f's_add_u32 s{sT0}, s{sHO}, 4096\nbuffer_load_dwordx4 {vr(self.BB[k]+16,4)}, v{vW}, s[{SRD_WS}:{SRD_WS+3}], s{sT0} offen{self.c.p2sc}')
                else:
                    a(f'buffer_load_dwordx4 {vr(self.BB[k]+4*j,4)}, v{vW}, s[{SRD_WS}:{SRD_WS+3}], s{sHO} offen offset:{1024*j}{self.c.p2sc}')
            a(f's_add_u32 s{sHO}, s{sHO}, 5120')
        for q in range(5 if early else 4):
            n = 4 if (early or q < 3) else 3
            a(f's_add_u32 m0, s{sDM}, {4096*q}\ns_nop 0')
            for j in range(n):
                a(f'buffer_load_dwordx4 v{vW}, s[{SRD_WS}:{SRD_WS+3}], s{sHO} offen offset:{1024*j}{self.c.p2sc} lds')
            a(f's_add_u32 s{sHO}, s{sHO}, 4096')
        self.srd(SRD_X, 16, 2048*1280)
        self.srd(SRD_O, 30, 2048*1280)
        a(f'''s_mul_i32 s8, s{sRB2}, {64*1280}
        s_mul_i32 s9, s{sCB}, 160
        s_add_u32 s{sXO}, s8, s9
        s_lshl_b32 s8, s{sWAVE}, 6''')
        for n in range(1 if early else 2):
            a(f'''v_add_u32 v{vT0}, s8, v0
            v_mul_u32_u24 v{vT1}, 6554, v{vT0}
            v_lshrrev_b32 v{vT1}, 16, v{vT1}
            v_mul_u32_u24 v{vW+2}, 10, v{vT1}
            v_sub_u32 v{vT0}, v{vT0}, v{vW+2}
            v_mul_u32_u24 v{vW+2}, 1280, v{vT1}
            v_lshl_add_u32 v{152+2*n}, v{vT0}, 4, v{vW+2}
            v_mul_u32_u24 v{vW+2}, 336, v{vT1}
            v_lshl_add_u32 v{153+2*n}, v{vT0}, 4, v{vW+2}''')
            if n == 1:
                a(f's_cmp_lt_u32 s{sWAVE}, 2\ns_cselect_b32 s9, 0, {OOB}\nv_add_u32 v{152+2*n}, s9, v{152+2*n}')
            a(f'buffer_load_dwordx4 {vr(144+4*n,4)}, v{152+2*n}, s[{SRD_X}:{SRD_X+3}], s{sXO} offen')
            a(f's_add_u32 s8, s8, 512')
        a(f'''s_lshl_b32 s8, s{sRB2}, 9
        s_lshl_b32 s9, s{sU0}, 2
        s_add_u32 s8, s8, s9
        s_add_u32 s{sQO}, s8, {WS_ROWF}
        v_min_u32 v{vT0}, {8 if early else 2}, v0
        v_lshl_add_u32 v{vP0}, v{vT0}, 2, s{sQO}''')
        self.stamp(16)
        self.poll(vP0, vP1, 'act')
        self.stamp(17)

    def a_loads(self, k, dst, comp=False):
        L = []
        if comp:
            for t in range(4):
                for h in range(2):
                    L.append(f'buffer_load_dwordx2 {vr(dst+4*t+2*h,2)}, v{vW+2}, s[{SRD_WS}:{SRD_WS+3}], s{sAO} offen offset:{1024*t+512*h}{self.c.p2sc}')
        else:
            for t in range(4):
                L.append(f'buffer_load_dwordx4 {vr(dst+4*t,4)}, v{vW}, s[{SRD_WS}:{SRD_WS+3}], s{sAO} offen offset:{1024*t}{self.c.p2sc}')
        L[-1] += f'\ns_add_u32 s{sAO}, s{sAO}, 4096'
        return L

    def b_reads(self, slot, dst):
        return [f'ds_read_b128 {vr(dst+4*j,4)}, v{vW+1} offset:{5120*slot + 1024*j}' for j in range(5)]

    def p2_early(self):
        a = self.a
        self.p2_common_setup(True)
        AB, BB = self.AB, self.BB
        Adst = [AB[0], AB[1], AB[2], AB[0], BB[0], AB[1], AB[2], BB[2], AB[0]]
        Bsrc = [BB[0], BB[1], BB[2], BB[3], BB[4], BB[1], BB[3], BB[4], BB[0]]
        after_A = {0: [3, 4], 1: [5], 2: [6, 7], 3: [8]}
        after_B = {1: [5], 3: [6], 4: [7, 8]}
        issued = []
        for k in range(3):
            for l in self.a_loads(k, Adst[k]): a(l)
            issued.append(k)
        pend_lds = []
        for k in range(9):
            later = len([x for x in issued if x > k])
            w = f's_waitcnt vmcnt({4*later})'
            if k >= 5: w += f' lgkmcnt({5 * len([x for x in pend_lds if x > k])})'
            a(w)
            m = self.p2_mfma(Adst[k], Bsrc[k], k == 0)
            fill = []
            for x in after_A.get(k - 1, []): fill += self.a_loads(x, Adst[x]); issued.append(x)
            for x in after_B.get(k - 1, []): fill += self.b_reads(x - 5, Bsrc[x]); pend_lds.append(x)
            for l in interleave(m, fill, per=1, start=1): a(l)
        self.stamp(18)
        for n in range(20): a(f'ds_write_b128 v{vW+1}, {vr(ACC+4*n,4)} offset:{1024*n}')
        Lx = a.label('Lnoep')
        a(f'''s_lshl_b32 s8, s2, 3
        s_add_u32 s8, s8, s{sWAVE}
        s_cmp_eq_u32 s8, 4
        s_cbranch_scc0 {Lx}''')
        for q in range(4):
            a(f'v_lshlrev_b32 v{vP0}, 2, v0\nv_add_u32 v{vP0}, {WS_ALIVE + 256*q}, v{vP0}')
            self.poll(vP0, vP1, f'alive{q}')
        a(f's_mov_b32 s8, {WS_EPOCH}')
        self.flag_store(8)
        a(f'{Lx}:\ns_waitcnt lgkmcnt(0)')
        self.stamp(19)
        a('s_barrier')
        self.stamp(20)
        a('s_branch L_final')

    def p2_late(self):
        a = self.a
        a('L_p2late:')
        self.p2_common_setup(False)
        AB, BB = self.AB, self.BB
        for k in range(3):
            for l in self.a_loads(k, AB[k]): a(l)
        for k in range(3):
            a(f's_waitcnt vmcnt({4*(2-k)})')
            for l in self.p2_mfma(AB[k], BB[k], k == 0): a(l)
        self.stamp(18)
        a(f'''v_min_u32 v{vT0}, 1, v0
        v_lshlrev_b32 v{vT0}, 3, v{vT0}
        v_add_u32 v{vT0}, 12, v{vT0}
        v_add_u32 v{vP0}, s{sQO}, v{vT0}
        v_lshlrev_b32 v{vW+2}, 3, v0''')
        self.poll(vP0, vP1, 'o')
        self.stamp(19)
        Adst = {3: AB[0], 4: AB[1], 5: AB[2], 6: BB[0], 7: BB[1]}
        Bsrc = {3: BB[3], 4: BB[4], 5: BB[2], 6: BB[3], 7: BB[4]}
        for k in range(3, 8):
            for l in self.a_loads(k, Adst[k], comp=(k == 7)): a(l)
        a('s_barrier')
        self.stamp(20)
        a(f'v_subrev_u32 v{vT0}, 20480, v{vW+1}')
        for q in range(4):
            for n in range(5): a(f'ds_read_b128 {vr(BB[2]+4*n,4)}, v{vT0} offset:{1024*(5*q+n)}')
            for n in range(5):
                a(f's_waitcnt lgkmcnt({4-n})')
                for r in range(4): a(f'v_add_f32 v{ACC+20*q+4*n+r}, v{ACC+20*q+4*n+r}, v{BB[2]+4*n+r}')
        for l in self.b_reads(0, BB[2]): a(l)
        cnt = {3: 20, 4: 16, 5: 12, 6: 8, 7: 0}
        for k in range(3, 8):
            w = f's_waitcnt vmcnt({cnt[k]})'
            if k >= 5: w += ' lgkmcnt(0)' if k != 6 else ' lgkmcnt(5)'
            a(w)
            m = self.p2_mfma(Adst[k], Bsrc[k], False)
            fill = []
            if k == 4: fill = self.b_reads(1, BB[3])
            if k == 5: fill = self.b_reads(2, BB[4])
            for l in interleave(m, fill, per=1, start=1): a(l)
        self.stamp(21)
        a(f'''v_and_b32 v{vT0}, 15, v0
        v_mul_u32_u24 v{vT0}, 336, v{vT0}
        v_bfe_u32 v{vT1}, v0, 4, 1
        v_mul_u32_u24 v{vT1}, 160, v{vT1}
        v_add_u32 v{vT0}, v{vT0}, v{vT1}
        v_lshrrev_b32 v{vT1}, 5, v0
        v_lshl_add_u32 v{vT0}, v{vT1}, 4, v{vT0}
        s_sub_u32 s8, s{sDM}, 20480
        v_add_u32 v{vT0}, s8, v{vT0}''')
        for t in range(4):
            for j in range(5):
                a(f'ds_write_b128 v{vT0}, {vr(ACC+4*(5*t+j),4)} offset:{5376*t + 32*j}')
        a('s_waitcnt lgkmcnt(0)')

    def final(self):
        a = self.a
        a('L_final:')
        self.stamp(22)
        a('s_barrier')
        self.stamp(23)
        def task(n):
            R = 16
            a(f'v_add_u32 v{vT0}, {2*PAIR}, v{153+2*n}')
            for p in range(4):
                vb = 153 + 2*n if p < 2 else vT0
                for h in range(2):
                    a(f'ds_read_b128 {vr(R+8*p+4*h,4)}, v{vb} offset:{(p & 1)*PAIR + 160*h}')
            a('s_waitcnt lgkmcnt(4)')
            for i in range(8): a(f'v_add_f32 v{R+i}, v{R+i}, v{R+8+i}')
            a('s_waitcnt lgkmcnt(0)')
            for i in range(8): a(f'v_add_f32 v{R+16+i}, v{R+16+i}, v{R+24+i}')
            for i in range(4):
                a(f'v_lshlrev_b32 v{R+8+2*i}, 16, v{144+4*n+i}')
                a(f'v_and_b32 v{R+8+2*i+1}, 0xffff0000, v{144+4*n+i}')
            for i in range(8): a(f'v_add_f32 v{R+i}, v{R+i}, v{R+16+i}')
            for i in range(8): a(f'v_add_f32 v{R+i}, v{R+i}, v{R+8+i}')
            for i in range(4): a(f'v_cvt_pk_bf16_f32 v{R+32+4*n+i}, v{R+2*i}, v{R+2*i+1}')
            a(f'buffer_store_dwordx4 {vr(R+32+4*n,4)}, v{152+2*n}, s[{SRD_O}:{SRD_O+3}], s{sXO} offen')
        task(0)
        a(f's_cmp_lt_u32 s{sWAVE}, 2\ns_cbranch_scc0 L_fin')
        task(1)
        a('L_fin:')
        if self.c.stamps:
            self.stamp(24); a('s_waitcnt vmcnt(0)'); self.stamp(25); self.stamp_store()
        a('L_end:\ns_endpgm\nL_code_end:')

    def build(self):
        a = self.a
        ones = 184
        self.entry()
        roles = {}
        def ones_init():
            for i in range(4): a(f'v_mov_b32 v{244+i}, 0x3f803f80')
        r = dict(name='h2a', typ=1, nt=2, orient=2, tiles=[(vW, 0), (vW+1, 0)], rs8=1024, stat=[], dma=True, ones=244)
        self.light_prologue(1); ones_init()
        self.main_loop(r); self.exchange(r); self.h_epilogue(r)
        a('s_branch L_p2early')
        a('L_h2b:')
        r = dict(name='h2b', typ=2, nt=2, orient=2, tiles=[(vW, 0), (vW+1, 0)], rs8=2048, stat=[], dma=True, ones=244)
        self.light_prologue(2); ones_init()
        self.main_loop(r); self.exchange(r); self.h_epilogue(r)
        a('L_p2early:')
        self.p2_early()
        self.vs = 207
        self.heavy_common()
        ones_init_done = False
        self.kv_prologue(); ones_init()
        a(f's_cmp_eq_u32 s{sWP}, 0\ns_cbranch_scc0 L_kvb')
        tiles = [(vW, 0), (vW, 32), (vW+1, 0), (vW, 192), (vW, 224)]
        r = dict(name='kva', typ=1, nt=5, orient=1, tiles=tiles, rs8=2816, stat=[0, 1], dma=False, ones=244, repack=True)
        self.main_loop(r); self.exchange(r)
        a('s_branch L_kvepi\nL_kvb:')
        r2 = dict(r, name='kvb', stat=[2, 3])
        self.main_loop(r2); self.exchange(r2)
        a('L_kvepi:')
        self.kv_epilogue(r)
        a('s_branch L_p2late')
        self.t2heavy_prologue(); ones_init()
        r = dict(name='q5', typ=2, nt=5, orient=2, tiles=[(vW, 32*T) for T in range(5)], rs8=1280, stat=[0, 1], dma=False, ones=244, repack=True, zero_kvf=True)
        self.main_loop(r); self.exchange(r); self.q_phi(r)
        a('s_branch L_kvg')
        self.h4_prologue(); ones_init()
        r = dict(name='h4', typ=2, nt=4, orient=2, tiles=[(vW+T, 0) for T in range(4)], rs8=2048, stat=[2, 3], dma=False, ones=244, repack=True, zero_kvf=True)
        self.main_loop(r); self.exchange(r); self.h_epilogue(r)
        a('L_kvg:')
        self.kv_gather()
        a(f's_cmp_eq_u32 s{sWP}, 0\ns_cbranch_scc0 L_p2late')
        self.q_out()
        self.p2_late()
        self.final()
        body = a.text()
        return f'''; Fused LayerNorm + linear attention + mish MLP, one persistent launch (generated by dev/gen.py)
; @launch grid=(256,1,1) block=(512,1,1) lds={LDS_SIZE}
.amdgcn_target "amdgcn-amd-amdhsa--gfx950"
.text
.globl {NAME}
.p2align 8
.type {NAME},@function
{NAME}:
{body}
.section .rodata,"a"
.p2align 6
.amdhsa_kernel {NAME}
  .amdhsa_next_free_vgpr 256
  .amdhsa_next_free_sgpr 102
  .amdhsa_accum_offset 256
  .amdhsa_group_segment_fixed_size 0
  .amdhsa_kernarg_size 80
  .amdhsa_user_sgpr_count 2
  .amdhsa_user_sgpr_kernarg_segment_ptr 1
  .amdhsa_system_sgpr_workgroup_id_x 1
  .amdhsa_float_denorm_mode_32 3
.end_amdhsa_kernel
'''

def generate(path, **kw):
    c = Cfg()
    for k, v in kw.items(): setattr(c, k, v)
    g = Gen(c)
    s = g.build()
    open(path, 'w').write(s)
    return g

if __name__ == '__main__':
    out = sys.argv[1] if len(sys.argv) > 1 else 'k.s'
    kw = {}
    for x in sys.argv[2:]:
        k, v = x.split('='); kw[k] = eval(v)
    g = generate(out, **kw)
    print('nops inserted', g.a.nops, 'lines', len(g.a.lines))
```
